```python
import torch

def _softmax(x, axis=-1):
    return torch.softmax(x, dim=axis)
def _gelu(x):
    return torch.nn.functional.gelu(x, approximate="tanh")
def _silu(x):
    return torch.nn.functional.silu(x)
def _sigmoid(x):
    return torch.sigmoid(x)
def _layernorm(x, axis=-1, eps=1e-5):
    m = x.mean(dim=axis, keepdim=True)
    v = x.var(dim=axis, keepdim=True, unbiased=False)
    return (x - m) / torch.sqrt(v + eps)
def _scatter_add(tgt, idx, src, axis=0):
    return tgt.clone().index_add_(axis, idx, src)
def _segment_sum(src, seg, n):
    out = torch.zeros((n,) + src.shape[1:], dtype=src.dtype)
    return out.index_add_(0, seg, src)
def _pad(x, pw):
    flat = tuple(v for pair in reversed(pw) for v in pair)
    return torch.nn.functional.pad(x, flat)

kernel_name = 'parallel_sum__sliding_local_dilated__geglu_ffn__prompt'

def setup_inputs():

    _w = (lambda a: (lambda t: t.to(torch.bfloat16) if t.is_floating_point() else t)(torch.as_tensor(a)))
    def _A_setup():
        B, S, D = 1, 2048, 512
        return {
            "x": _w((lambda *s: torch.randn(*s, dtype=torch.bfloat16) * 0.05)(B, S, D)),
            "wqkv": _w((lambda *s: torch.randn(*s, dtype=torch.bfloat16) * 0.05)(D, 3 * D)),
            "wo": _w((lambda *s: torch.randn(*s, dtype=torch.bfloat16) * 0.05)(D, D)),
        }
    _A_in = _A_setup()

    def _B_setup():
        B, S, D, F = 1, 2048, 512, 1376
        return {
            "x": _w((lambda *s: torch.randn(*s, dtype=torch.bfloat16) * 0.05)(B, S, D)),
            "w_gate": _w((lambda *s: torch.randn(*s, dtype=torch.bfloat16) * 0.05)(D, F)),
            "w_up": _w((lambda *s: torch.randn(*s, dtype=torch.bfloat16) * 0.05)(D, F)),
            "w_down": _w((lambda *s: torch.randn(*s, dtype=torch.bfloat16) * 0.05)(F, D)),
        }
    _B_in = _B_setup()

    return {
        "A_x": _A_in["x"],
        "A_wqkv": _A_in["wqkv"],
        "A_wo": _A_in["wo"],
        "B_x": _B_in["x"],
        "B_w_gate": _B_in["w_gate"],
        "B_w_up": _B_in["w_up"],
        "B_w_down": _B_in["w_down"],
    }

def reference(A_x, A_wqkv, A_wo, B_x, B_w_gate, B_w_up, B_w_down):
    def _A_ref(x, wqkv, wo):
        B, S, D = x.shape
        H = 32; Dh = D // H
        W, dil = 8, 2
        qkv = (lambda x, *d: x.permute(*d))((x @ wqkv).reshape(B, S, 3, H, Dh), 2, 0, 3, 1, 4)
        q, k, v = qkv[0], qkv[1], qkv[2]
        scale = Dh ** -0.5
        pos = torch.arange(S)
        off = torch.arange(W) * dil
        idx = pos[:, None] - off[None, :]
        mask = idx >= 0
        idx_c = torch.where(mask, idx, 0).reshape(-1)
        kg = k[:, :, idx_c, :].reshape(B, H, S, W, Dh)
        vg = v[:, :, idx_c, :].reshape(B, H, S, W, Dh)
        logits = torch.einsum("bhsd,bhswd->bhsw", q, kg) * scale
        logits = torch.where(mask[None, None, :, :], logits, -1e9)
        attn = _softmax(logits, axis=-1)
        o = torch.einsum("bhsw,bhswd->bhsd", attn, vg)
        return (lambda x, *d: x.permute(*d))(o, 0, 2, 1, 3).reshape(B, S, D) @ wo

    def _B_ref(x, w_gate, w_up, w_down):
        return (_gelu(x @ w_gate) * (x @ w_up)) @ w_down

    x = A_x
    xn = _layernorm(x, axis=-1)
    return x + _A_ref(xn, A_wqkv, A_wo) + _B_ref(xn, B_w_gate, B_w_up, B_w_down)
```

```python
import re

REG_RE = re.compile(r'^(-|abs\()?([vas])(\d+)\)?$')
RNG_RE = re.compile(r'^(-)?([vas])\[(\d+):(\d+)\]$')

TRANS = ('v_exp_f32', 'v_log_f32', 'v_rcp_f32', 'v_rsq_f32', 'v_sqrt_f32', 'v_sin_f32', 'v_cos_f32', 'v_rcp_iflag_f32')


def regs_of(op):
    op = op.strip()
    m = REG_RE.match(op)
    if m:
        return [(m.group(2), int(m.group(3)))]
    m = RNG_RE.match(op)
    if m:
        return [(m.group(2), i) for i in range(int(m.group(3)), int(m.group(4)) + 1)]
    if op == 'vcc':
        return [('s', 'vcc')]
    if op in ('vcc_lo', 'vcc_hi'):
        return [('s', 'vcc')]
    if op in ('exec', 'exec_lo', 'exec_hi'):
        return [('s', 'exec')]
    if op == 'm0':
        return [('s', 'm0')]
    return []


def split_ops(s):
    out, depth, cur = [], 0, ''
    for ch in s:
        if ch in '[(':
            depth += 1
        if ch in '])':
            depth -= 1
        if ch == ',' and depth == 0:
            out.append(cur.strip())
            cur = ''
        else:
            cur += ch
    if cur.strip():
        out.append(cur.strip())
    return out


class Ins:
    __slots__ = ('text', 'mn', 'ops', 'mods', 'kind', 'defs', 'uses', 'cond', 'A', 'B', 'C', 'D', 'passes', 'note', 'wide_data')

    def __init__(self, text, cond=False):
        self.text = text.strip()
        self.cond = cond
        self.note = None
        t = self.text.split(';')[0].strip()
        parts = t.split(None, 1)
        self.mn = mn = parts[0]
        rest = parts[1] if len(parts) > 1 else ''
        ops = split_ops(rest)
        mods = ''
        if ops:
            last = ops[-1].split(None, 1)
            if len(last) > 1 and not mn.startswith('s_waitcnt'):
                ops[-1] = last[0]
                mods = last[1]
        self.ops, self.mods = ops, mods
        self.defs, self.uses = set(), set()
        self.A = self.B = self.C = self.D = None
        self.passes = 0
        self.wide_data = set()
        R = lambda i: set(regs_of(ops[i])) if i < len(ops) else set()
        allr = lambda lo: set().union(*[R(i) for i in range(lo, len(ops))]) if len(ops) > lo else set()
        if t.endswith(':'):
            self.kind = 'label'
        elif mn.startswith('.'):
            self.kind = 'dir'
        elif mn.startswith('v_mfma'):
            self.kind = 'mfma'
            self.D, self.A, self.B, self.C = R(0), R(1), R(2), R(3)
            self.defs = set(self.D)
            self.uses = self.A | self.B | self.C
            self.passes = 8 if '32x32' in mn else 4
        elif mn.startswith('ds_read') or mn.startswith('ds_bpermute') or mn.startswith('ds_swizzle') or mn.startswith('ds_permute'):
            self.kind = 'ds'
            self.defs = R(0)
            self.uses = allr(1)
        elif mn.startswith('ds_write') or mn.startswith('ds_add'):
            self.kind = 'ds'
            self.uses = allr(0)
        elif mn.startswith('buffer_load') and re.search(r'\blds\b', mods):
            self.kind = 'dma'
            self.uses = allr(0) | {('s', 'm0')}
        elif mn.startswith('buffer_load') or mn.startswith('global_load'):
            self.kind = 'vm'
            self.defs = R(0)
            self.uses = allr(1)
        elif mn.startswith('buffer_store'):
            self.kind = 'vm'
            self.uses = allr(0)
            if 'x3' in mn or 'x4' in mn:
                self.wide_data = R(0)
        elif mn.startswith('global_store'):
            self.kind = 'vm'
            self.uses = allr(0)
            if 'x3' in mn or 'x4' in mn:
                self.wide_data = R(1)
        elif mn.startswith('buffer_atomic') or mn.startswith('global_atomic'):
            self.kind = 'vm'
            self.uses = allr(0)
            if 'sc0' in mods:
                self.defs = R(0)
        elif mn in ('buffer_inv', 'buffer_wbl2'):
            self.kind = 'vm'
        elif mn.startswith('s_load') or mn.startswith('s_buffer_load') or mn in ('s_memtime', 's_memrealtime'):
            self.kind = 'smem'
            self.defs = R(0)
            self.uses = allr(1)
        elif mn == 's_waitcnt':
            self.kind = 'wait'
        elif mn == 's_barrier':
            self.kind = 'barrier'
        elif mn == 's_nop':
            self.kind = 'nop'
        elif mn.startswith('s_cbranch') or mn in ('s_branch', 's_endpgm', 's_setpc_b64'):
            self.kind = 'branch'
            if 'vcc' in mn:
                self.uses = {('s', 'vcc')}
            if 'exec' in mn:
                self.uses = {('s', 'exec')}
        elif mn.startswith('s_cmp') or mn.startswith('s_bitcmp'):
            self.kind = 'salu'
            self.uses = allr(0)
        elif mn in ('s_sleep', 's_setprio', 's_sethalt'):
            self.kind = 'salu'
        elif mn.startswith('s_'):
            self.kind = 'salu'
            self.defs = R(0)
            self.uses = allr(1)
            if 'saveexec' in mn:
                self.defs |= {('s', 'exec')}
                self.uses |= {('s', 'exec')}
            if mn in ('s_addk_i32', 's_mulk_i32', 's_cmov_b32', 's_cmov_b64'):
                self.uses |= R(0)
        elif mn.startswith('v_'):
            base = re.sub(r'_(e32|e64|dpp|sdwa)$', '', mn)
            self.kind = 'trans' if base in TRANS else 'valu'
            if base.startswith('v_permlane') and 'swap' in base:
                self.defs = R(0) | R(1)
                self.uses = R(0) | R(1)
            elif base.startswith('v_add_co') or base.startswith('v_sub_co') or base.startswith('v_addc_co'):
                self.defs = R(0) | R(1)
                self.uses = allr(2)
            else:
                self.defs = R(0)
                self.uses = allr(1)
                if base in ('v_fmac_f32', 'v_dot2c_f32_bf16', 'v_writelane_b32', 'v_pk_fmac_f16'):
                    self.uses |= R(0)
                if 'dpp' in mn or 'row_' in mods or 'quad_perm' in mods:
                    self.uses |= R(0)
                if base == 'v_cndmask_b32' and len(ops) == 3:
                    self.uses |= {('s', 'vcc')}
            self.uses |= {('s', 'exec')}
        else:
            raise ValueError('unknown instruction: ' + text)
        for kind, name in re.findall(r'@(def|use) (\w+)', self.text):
            (self.defs if kind == 'def' else self.uses).add(('L', name))

    @property
    def is_valu(self):
        return self.kind in ('valu', 'trans')

    @property
    def is_dpp(self):
        return self.is_valu and ('_dpp' in self.mn or 'row_' in self.mods or 'quad_perm' in self.mods)


def parse_wait(ins):
    vm = lg = None
    m = re.search(r'vmcnt\((\d+)\)', ins.text)
    if m:
        vm = int(m.group(1))
    m = re.search(r'lgkmcnt\((\d+)\)', ins.text)
    if m:
        lg = int(m.group(1))
    return vm, lg


def required_gap(p, c):
    need = 0
    vdefs = {r for r in p.defs if r[0] in 'va'}
    sdefs = {r for r in p.defs if r[0] == 's'}
    if p.is_valu:
        if c.kind == 'mfma' and (vdefs & c.uses):
            need = max(need, 2)
        if c.is_valu:
            if c.mn.startswith('v_permlane') and (vdefs & c.uses):
                need = max(need, 2)
            if c.is_dpp and (vdefs & c.uses):
                need = max(need, 2)
            if (c.mn.startswith('v_readfirstlane') or c.mn.startswith('v_readlane')) and (vdefs & c.uses):
                need = max(need, 1)
            if p.kind == 'trans' and (vdefs & c.uses):
                need = max(need, 1)
            s2 = sdefs - {('s', 'exec')}
            if s2 & c.uses:
                need = max(need, 4 if c.mn.startswith('v_readlane') or c.mn.startswith('v_writelane') else 2)
            if ('sdwa' in p.mn or 'op_sel' in p.mods) and not p.mn.startswith('v_pk_') and (vdefs & (c.uses | c.defs)):
                need = max(need, 1)
        if c.kind in ('vm', 'dma') and (sdefs & c.uses):
            need = max(need, 5)
        if c.kind == 'branch' and (sdefs & c.uses):
            need = max(need, 5)
    if p.kind == 'mfma':
        n_rd = 8 if p.passes == 4 else 12
        if c.kind == 'mfma':
            if p.D & (c.A | c.B):
                need = max(need, n_rd)
            if p.D & c.C and not (p.D == c.C and p.passes == c.passes):
                need = max(need, 6 if p.passes == 4 else 10)
            if p.D & c.D and not (p.D == c.C):
                need = max(need, n_rd)
        elif c.kind in ('valu', 'trans', 'vm', 'ds', 'dma'):
            if p.D & (c.uses | c.defs):
                need = max(need, n_rd)
            if c.is_valu and (p.C & c.defs):
                need = max(need, 3 if p.passes == 4 else 7)
            if c.kind in ('vm', 'ds') and (p.C & c.defs):
                need = max(need, 3 if p.passes == 4 else 7)
    if p.kind == 'salu' and ('s', 'm0') in p.defs and c.kind == 'dma':
        need = max(need, 1)
    if p.kind == 'vm' and p.wide_data:
        if p.wide_data & c.defs:
            need = max(need, 2)
    return need


class Prog:
    def __init__(self):
        self.items = []
        self.cond = False

    def I(self, text, cond=None):
        for line in text.split('\n'):
            line = line.strip()
            if not line or line.startswith(';'):
                continue
            self.items.append(Ins(line, self.cond if cond is None else cond))

    def extend(self, insts):
        self.items.extend(insts)

    def finalize(self, check_only=False):
        out = []
        vmq, lgq = [], []
        hist = []

        def count_after(q, idx):
            return sum(1 for x in q[idx + 1:] if not x.cond)

        def apply_wait(vm, lg):
            nonlocal vmq, lgq
            if vm is not None:
                vmq = [x for i, x in enumerate(vmq) if count_after(vmq, i) < vm]
            if lg is not None:
                if any(x.kind == 'smem' for x in lgq):
                    if lg == 0:
                        lgq = []
                else:
                    lgq = [x for i, x in enumerate(lgq) if count_after(lgq, i) < lg]

        def emit(ins):
            out.append(ins)
            if ins.kind in ('label', 'dir'):
                return
            st = 1
            if ins.kind == 'nop':
                st = int(ins.ops[0], 0) + 1
            hist.append((ins, st))
            if len(hist) > 24:
                hist.pop(0)

        for ins in self.items:
            if ins.kind == 'label' or ins.kind == 'dir':
                emit(ins)
                continue
            if ins.kind == 'wait':
                vm, lg = parse_wait(ins)
                apply_wait(vm, lg)
                emit(ins)
                continue
            touched = ins.uses | ins.defs
            need_vm = need_lg = None
            for i, x in enumerate(vmq):
                if x.defs & touched:
                    if ins.kind in ('vm', 'dma') and not (x.defs & ins.uses):
                        continue
                    n = count_after(vmq, i)
                    need_vm = n if need_vm is None else min(need_vm, n)
            for i, x in enumerate(lgq):
                if x.defs & touched:
                    if ins.kind == 'ds' and x.kind == 'ds' and not (x.defs & ins.uses):
                        continue
                    n = count_after(lgq, i)
                    if any(y.kind == 'smem' for y in lgq):
                        n = 0
                    need_lg = n if need_lg is None else min(need_lg, n)
            if need_vm is not None or need_lg is not None:
                s = 's_waitcnt'
                if need_vm is not None:
                    need_vm = min(need_vm, 63)
                    s += ' vmcnt(%d)' % need_vm
                if need_lg is not None:
                    need_lg = min(need_lg, 15)
                    s += ' lgkmcnt(%d)' % need_lg
                w = Ins(s)
                if need_vm is not None:
                    last = max(i for i, x in enumerate(vmq) if x.defs & touched and not (ins.kind in ('vm', 'dma') and not (x.defs & ins.uses)))
                    vmq = vmq[last + 1:]
                if need_lg is not None:
                    if any(y.kind == 'smem' for y in lgq):
                        lgq = []
                    else:
                        cand = [i for i, x in enumerate(lgq) if x.defs & touched and not (ins.kind == 'ds' and x.kind == 'ds' and not (x.defs & ins.uses))]
                        lgq = lgq[max(cand) + 1:]
                emit(w)
            gap = 0
            need = 0
            for p, st in reversed(hist):
                r = required_gap(p, ins)
                if r > gap:
                    need = max(need, r - gap)
                gap += st
                if gap >= 13:
                    break
            while need > 0:
                n = min(need, 16)
                emit(Ins('s_nop %d' % (n - 1)))
                need -= n
            emit(ins)
            if ins.kind in ('vm', 'dma'):
                vmq.append(ins)
            elif ins.kind in ('ds', 'smem'):
                lgq.append(ins)
        self.final = out
        return '\n'.join(('' if x.kind == 'label' else '  ') + x.text for x in out) + '\n'

    def stats(self):
        from collections import Counter
        return Counter(x.kind for x in self.final)


def v(a, n=1):
    return 'v%d' % a if n == 1 else 'v[%d:%d]' % (a, a + n - 1)


def a(x, n=1):
    return 'a%d' % x if n == 1 else 'a[%d:%d]' % (x, x + n - 1)


def s(x, n=1):
    return 's%d' % x if n == 1 else 's[%d:%d]' % (x, x + n - 1)


def interleave(mfmas, fillers):
    out = list(fillers.get(-1, []))
    for i, m in enumerate(mfmas):
        out.append(m)
        out.extend(fillers.get(i, []))
    return out
```

```python
from p1e import *


def wave_sum(P, regs, tmp):
    for mod in ('quad_perm:[1,0,3,2]', 'quad_perm:[2,3,0,1]', 'row_half_mirror', 'row_mirror'):
        for r in regs:
            P.I('v_add_f32_dpp v%d, v%d, v%d %s row_mask:0xf bank_mask:0xf' % (r, r, r, mod))
    for sw in ('v_permlane16_swap_b32', 'v_permlane32_swap_b32'):
        for r, t in zip(regs, tmp):
            P.I('v_mov_b32 v%d, v%d' % (t, r))
        for r, t in zip(regs, tmp):
            P.I('%s v%d, v%d' % (sw, r, t))
        for r, t in zip(regs, tmp):
            P.I('v_add_f32 v%d, v%d, v%d' % (r, r, t))


def rnd_bf16(P, r):
    P.I('v_cvt_pk_bf16_f32 v%d, v%d, v%d\nv_lshlrev_b32 v%d, 16, v%d' % (r, r, r, r, r))


def ln_rows(P, X, F, srd_out, soff, voff, aux=''):
    n = len(X)
    S = [30 + i for i in range(n)]
    Q = [34 + i for i in range(n)]
    T = [38 + i for i in range(n)]
    for i in range(n):
        for d in range(4):
            P.I('v_lshlrev_b32 v%d, 16, v%d\nv_and_b32 v%d, 0xffff0000, v%d' % (F[i] + 2 * d, X[i] + d, F[i] + 2 * d + 1, X[i] + d))
        P.I('v_add_f32 v%d, v%d, v%d' % (S[i], F[i], F[i] + 1))
        for d in range(2, 8):
            P.I('v_add_f32 v%d, v%d, v%d' % (S[i], S[i], F[i] + d))
    wave_sum(P, S, T)
    for i in range(n):
        P.I('v_mul_f32 v%d, 0x3b000000, v%d' % (S[i], S[i]))
        P.I('v_sub_f32 v%d, v%d, v%d\nv_mul_f32 v%d, v%d, v%d' % (T[i], F[i], S[i], Q[i], T[i], T[i]))
        for d in range(1, 8):
            P.I('v_sub_f32 v%d, v%d, v%d\nv_fmac_f32 v%d, v%d, v%d' % (T[i], F[i] + d, S[i], Q[i], T[i], T[i]))
    wave_sum(P, Q, T)
    for i in range(n):
        P.I('v_mul_f32 v%d, 0x3b000000, v%d' % (Q[i], Q[i]))
        rnd_bf16(P, Q[i])
        P.I('v_add_f32 v%d, %s, v%d' % (Q[i], fbits(1e-5), Q[i]))
        rnd_bf16(P, Q[i])
        P.I('v_sqrt_f32 v%d, v%d' % (Q[i], Q[i]))
        rnd_bf16(P, Q[i])
        P.I('v_rcp_f32 v%d, v%d' % (Q[i], Q[i]))
        rnd_bf16(P, S[i])
    for i in range(n):
        for d in range(4):
            a_, b_ = F[i] + 2 * d, F[i] + 2 * d + 1
            P.I('''v_sub_f32 v%d, v%d, v%d
v_sub_f32 v%d, v%d, v%d
v_cvt_pk_bf16_f32 v%d, v%d, v%d
v_lshlrev_b32 v%d, 16, v%d
v_and_b32 v%d, 0xffff0000, v%d
v_mul_f32 v%d, v%d, v%d
v_mul_f32 v%d, v%d, v%d
v_cvt_pk_bf16_f32 v%d, v%d, v%d''' % (a_, a_, S[i], b_, b_, S[i], T[i], a_, b_, a_, T[i], b_, T[i], a_, a_, Q[i], b_, b_, Q[i], X[i] + d, a_, b_))
        P.I('buffer_store_dwordx4 %s, v%d, s[%d:%d], s%d offen offset:%d %s' % (v(X[i], 4), voff, srd_out, srd_out + 3, soff, 1024 * i, aux))
```

```python
from asmgen import *

STAGE = 51200
NST = 3
PITCH_F = 2752
PITCH_Q = 3072

S_KA = 0
S_ID = 2
SRD_X = 4
SRD_WA = 8
SRD_WB = 12
SRD_WS = 16
SRD_WO = 20
SRD_WD = 24
SRD_OUT = 28
SRD_DBG = 32
S_PTR = 36
S_WAVE = 56
S_RB = 57
S_J = 58
S_P = 59
S_T0, S_T1, S_T2, S_T3 = 60, 61, 62, 63
S_XO = 64
S_WOFF = 71
S_WOFF2 = 72
S_M0X = 73
S_M0W = 74
S_KC = 75
S_DX = 76
S_TS = 80
V_LANE = 1
V_XD0, V_XD1 = 2, 3
V_WD0, V_WD1, V_WD2 = 4, 5, 6
V_XA0, V_XA1 = 7, 8
V_WA, V_WB = 9, 10
V_T = 11
V_FR = 40
V_ACC = 104


def mfma(d, A, B, first, swap=False):
    c = '0' if first else v(d, 4)
    x, y = (B, A) if swap else (A, B)
    return 'v_mfma_f32_16x16x32_bf16 %s, %s, %s, %s' % (v(d, 4), v(x, 4), v(y, 4), c)


def lane_decode(P):
    P.I('v_lshrrev_b32 v11, 6, v0\nv_and_b32 v1, 63, v0\nv_readfirstlane_b32 s%d, v11' % S_WAVE)


def role_decode(P):
    P.I('''s_and_b32 s60, s2, 7
s_lshl_b32 s60, s60, 5
s_lshr_b32 s61, s2, 3
s_add_u32 s59, s60, s61
s_mul_i32 s60, s59, 993
s_lshr_b32 s60, s60, 16
s_mul_i32 s61, s60, 66
s_sub_u32 s61, s59, s61
s_mul_i32 s62, s61, 10923
s_lshr_b32 s62, s62, 16
s_mul_i32 s63, s61, 13108
s_lshr_b32 s63, s63, 16
s_cmp_ge_u32 s60, 3
s_cselect_b32 s57, s63, s62
s_cselect_b32 s62, 5, 6
s_mul_i32 s62, s62, s57
s_sub_u32 s61, s61, s62
s_mul_i32 s60, s60, 6
s_add_u32 s58, s60, s61''')


def role_py(wg):
    p = (wg & 7) * 32 + (wg >> 3)
    g = p // 66
    rem = p % 66
    if g >= 3:
        return p, rem // 5, 18 + rem % 5
    return p, rem // 6, 6 * g + rem % 6


def check_role_math():
    for p in range(256):
        g = (p * 993) >> 16
        assert g == p // 66, p
        rem = p - 66 * g
        assert (rem * 10923) >> 16 == rem // 6
        assert (rem * 13108) >> 16 == rem // 5


check_role_math()


def srd(P, r, ptr, size):
    P.I('s_mov_b32 s%d, s%d\ns_mov_b32 s%d, s%d\ns_mov_b32 s%d, 0x%x\ns_mov_b32 s%d, 0x20000' % (r, ptr, r + 1, ptr + 1, r + 2, size, r + 3))


def x_grp(role, i):
    if role == 'ffn':
        return (i // 4) * 4, i % 4
    g0 = 0 if i < 2 else (2 if i < 6 else 6)
    return g0, i - g0


def x_dma_setup(P, role, xmode):
    n = 6 if role == 'ffn' else 7
    if role == 'ffn':
        P.I('s_mul_i32 s60, s56, 6')
    else:
        P.I('s_mul_i32 s60, s56, 7\ns_min_u32 s60, s60, 19')
    P.I('s_lshl_b32 s%d, s60, 10' % S_M0X)
    if xmode == 'raw':
        P.I('''v_lshrrev_b32 v11, 3, v1
v_lshlrev_b32 v11, 10, v11
v_and_b32 v12, 7, v1
v_lshrrev_b32 v13, 4, v1
v_xor_b32 v12, v12, v13
s_and_b32 s61, s60, 1
s_lshl_b32 s61, s61, 2
v_xor_b32 v12, s61, v12
v_lshl_add_u32 v2, v12, 4, v11
v_xor_b32 v3, 64, v2''')
        P.I('s_mul_i32 s61, s57, 192\ns_lshl_b32 s62, s60, 3\ns_add_u32 s61, s61, s62')
        if role == 'att':
            P.I('s_sub_u32 s61, s61, 16')
        for i in range(n):
            P.I('s_add_u32 s62, s61, %d' % (8 * i))
            if role == 'att' and i < 2:
                P.I('s_cmp_lt_i32 s62, 0\ns_cselect_b32 s63, 16, 0\ns_add_u32 s62, s62, s63')
            P.I('s_min_u32 s62, s62, 2040')
            P.I('s_lshl_b32 s62, s62, 10')
            P.I('s_sub_u32 s%d, s62, %d' % (S_XO + i, 1024 * x_grp(role, i)[1]))
    else:
        P.I('v_lshlrev_b32 v2, 4, v1')
        P.I('s_mul_i32 s61, s57, 192\ns_lshl_b32 s62, s60, 3\ns_add_u32 s61, s61, s62')
        if role == 'att':
            P.I('s_sub_u32 s61, s61, 16')
        for i in (0, 4):
            P.I('s_add_u32 s62, s61, %d\ns_lshl_b32 s%d, s62, 7' % (8 * i, S_XO + i))


def x_dma(role, xmode, stage):
    n = 6 if role == 'ffn' else 7
    out = []
    for i in range(n):
        g = []
        g0, gi = x_grp(role, i) if xmode == 'raw' else ((i // 4) * 4, i % 4)
        if gi == 0:
            g.append('s_add_u32 m0, s%d, %d' % (S_M0X, stage * STAGE + i * 1024))
        if xmode == 'raw':
            g.append('buffer_load_dwordx4 v%d, s[4:7], s%d offen offset:%d lds' % (V_XD0 + (i & 1), S_XO + i, 1024 * gi))
        else:
            g.append('buffer_load_dwordx4 v2, s[4:7], s%d offen offset:%d lds' % (S_XO + (i // 4) * 4, 1024 * (i % 4)))
        out.append(g)
    return out


def w_dma_setup(P, role):
    if role == 'ffn':
        P.I('s_mul_i32 s%d, s56, 3072\ns_add_u32 s%d, s%d, 24576' % (S_M0W, S_M0W, S_M0W))
        P.I('s_sub_u32 s60, s58, 8\ns_mul_i32 s60, s60, 192')
        P.I('s_mul_i32 s61, s56, %d\ns_add_u32 s60, s60, s61' % (16 * PITCH_F))
        P.I('s_mov_b32 s62, 21846\ns_mov_b32 s63, %d' % PITCH_F)
        for b in range(3):
            P.I('''v_add_u32 v11, %d, v1
v_mul_u32_u24 v12, s62, v11
v_lshrrev_b32 v12, 18, v12
v_mul_u32_u24 v13, 12, v12
v_sub_u32 v13, v11, v13
v_bfe_u32 v14, v12, 2, 1
v_lshlrev_b32 v15, 1, v14
v_xor_b32 v13, v13, v15
v_bfe_u32 v15, v12, 3, 1
v_and_b32 v12, 3, v12
v_lshl_add_u32 v12, v14, 3, v12
v_lshl_add_u32 v12, v15, 2, v12
v_mul_u32_u24 v12, s63, v12
v_lshl_add_u32 v12, v13, 4, v12
v_add_u32 v12, s60, v12
v_subrev_u32 v%d, %d, v12''' % (64 * b, V_WD0 + b, 1024 * b))
    else:
        P.I('s_mul_i32 s%d, s56, 6144\ns_add_u32 s%d, s%d, 26624' % (S_M0W, S_M0W, S_M0W))
        P.I('s_lshl_b32 s60, s58, 7\ns_mul_i32 s61, s56, %d\ns_add_u32 s60, s60, s61\ns_mov_b32 s63, %d' % (16 * PITCH_Q, PITCH_Q))
        P.I('''v_lshrrev_b32 v11, 3, v1
v_lshrrev_b32 v12, 2, v11
v_and_b32 v11, 3, v11
v_lshl_add_u32 v11, v12, 3, v11
v_mul_u32_u24 v11, s63, v11
v_lshrrev_b32 v12, 4, v1
v_lshlrev_b32 v12, 1, v12
v_and_b32 v13, 7, v1
v_xor_b32 v13, v13, v12
v_lshl_add_u32 v11, v13, 4, v11
v_add_u32 v4, s60, v11
v_add_u32 v5, %d, v4''' % (4 * PITCH_Q))


for q in range(192):
    assert (q * 21846) >> 18 == q // 12


def w_dma(role, stage):
    out = []
    if role == 'ffn':
        for m in range(2):
            for b in range(3):
                g = []
                if b == 0:
                    g.append('s_add_u32 m0, s%d, %d' % (S_M0W, stage * STAGE + m * 12288))
                g.append('buffer_load_dwordx4 v%d, s[%d:%d], s%d offen offset:%d lds' % (V_WD0 + b, SRD_WA + 4 * m, SRD_WA + 4 * m + 3, S_WOFF, 1024 * b))
                out.append(g)
    else:
        for jj in range(2):
            for m in range(3):
                g = []
                if m == 0:
                    g.append('s_add_u32 m0, s%d, %d' % (S_M0W, stage * STAGE + jj * 3072))
                g.append('buffer_load_dwordx4 v%d, s[8:11], s%d offen offset:%d lds' % (V_WD0 + jj, S_WOFF, 1024 * m))
                out.append(g)
    return out


def chunk_advance(role, xmode, rot):
    pitch = PITCH_F if role == 'ffn' else PITCH_Q
    out = []
    if rot:
        out.append('s_add_u32 s%d, s%d, 1' % (S_KC, S_KC))
        out.append('s_and_b32 s%d, s%d, 7' % (S_KC, S_KC))
        out.append('s_mul_i32 s%d, s%d, %d' % (S_WOFF, S_KC, 64 * pitch))
        out.append('s_cmp_eq_u32 s%d, 0' % S_KC)
        if xmode == 'raw':
            out.append('s_cselect_b32 s%d, -7, 1' % S_DX)
            out.append('s_lshl_b32 s%d, s%d, 7' % (S_DX, S_DX))
            out.append('v_add_u32 v2, s%d, v2' % S_DX)
            out.append('v_add_u32 v3, s%d, v3' % S_DX)
        else:
            out.append('s_cselect_b32 s%d, -7, 1' % S_DX)
            out.append('s_lshl_b32 s%d, s%d, 18' % (S_DX, S_DX))
            out.append('v_add_u32 v2, s%d, v2' % S_DX)
    else:
        out.append('s_add_u32 s%d, s%d, %d' % (S_WOFF, S_WOFF, 64 * pitch))
        if xmode == 'raw':
            out.append('v_add_u32 v2, 128, v2')
            out.append('v_add_u32 v3, 128, v3')
        else:
            out.append('v_add_u32 v2, 0x40000, v2')
    return out


def rot_init(P, role, xmode, rot):
    pitch = PITCH_F if role == 'ffn' else PITCH_Q
    if not rot:
        P.I('s_mov_b32 s%d, 0' % S_WOFF)
        return
    P.I('s_mul_i32 s%d, s%d, %d' % (S_WOFF, S_KC, 64 * pitch))
    if xmode == 'raw':
        P.I('s_lshl_b32 s60, s%d, 7\nv_add_u32 v2, s60, v2\nv_add_u32 v3, s60, v3' % S_KC)
    else:
        P.I('s_lshl_b32 s60, s%d, 18\nv_add_u32 v2, s60, v2' % S_KC)


def frag_addr_setup(P, role):
    P.I('''v_and_b32 v11, 15, v1
v_lshrrev_b32 v12, 4, v1
v_lshrrev_b32 v13, 1, v11
v_xor_b32 v13, v13, v12
v_lshlrev_b32 v13, 4, v13
v_lshl_add_u32 v7, v11, 7, v13''')
    if role == 'ffn':
        P.I('s_lshr_b32 s60, s56, 1\ns_mul_i32 s60, s60, %d\nv_add_u32 v7, s60, v7' % (6 * 2048))
    P.I('v_xor_b32 v8, 64, v7')
    P.I('''v_bfe_u32 v13, v1, 2, 2
v_and_b32 v14, 3, v1
v_and_b32 v15, 1, v12
v_lshrrev_b32 v16, 1, v12''')
    if role == 'ffn':
        P.I('''v_lshl_add_u32 v17, v15, 2, v13
v_lshl_add_u32 v17, v16, 4, v17
v_mul_u32_u24 v17, 0xc0, v17
v_lshl_add_u32 v17, v14, 3, v17
s_and_b32 s60, s56, 1
s_mul_i32 s61, s60, 3
v_xor_b32 v18, s61, v15
v_lshl_add_u32 v9, v18, 5, v17
s_add_u32 s61, s61, 1
v_xor_b32 v18, s61, v15
v_lshl_add_u32 v10, v18, 5, v17
v_subrev_u32 v10, 32, v10''')
    else:
        P.I('''v_lshl_add_u32 v17, v15, 2, v13
v_lshrrev_b32 v18, 1, v17
v_xor_b32 v18, s56, v18
v_lshlrev_b32 v18, 5, v18
v_lshl_add_u32 v18, v17, 7, v18
v_lshl_add_u32 v18, v14, 3, v18
v_mul_u32_u24 v16, 0x1800, v16
v_add_u32 v9, v16, v18''')


def stage_switch(role, c):
    d = STAGE if (c + 1) % NST else -(NST - 1) * STAGE
    regs = [V_XA0, V_XA1, V_WA] + ([V_WB] if role == 'ffn' else [])
    return ['v_add_u32 v%d, %d, v%d' % (r, d, r) for r in regs]


def dma_chunk(role, xmode, stage, rot, last):
    g = x_dma(role, xmode, stage)
    w = w_dma(role, stage)
    out = []
    for i in range(max(len(g), len(w))):
        if i < len(w):
            out.append(w[i])
        if i < len(g):
            out.append(g[i])
    return w + g + ([] if last else [chunk_advance(role, xmode, rot)])


def n_dma(role):
    return 12 if role == 'ffn' else 13


def ffn_acc(a_, b):
    return V_ACC + 4 * (6 * a_ + b)


def ffn_A_read(aidx, ks, buf):
    m, uu = aidx & 1, aidx >> 1
    reg = V_WB if uu == 1 else V_WA
    base = 24576 + m * 12288 + uu * 32 + 32 * ks * 192
    d = V_FR + 48 + 4 * buf
    return ['ds_read_b64_tr_b16 %s, v%d offset:%d' % (v(d, 2), reg, base),
            'ds_read_b64_tr_b16 %s, v%d offset:%d' % (v(d + 2, 2), reg, base + 8 * 192)]


def ffn_B_read(b, ks, buf):
    return 'ds_read_b128 %s, v%d offset:%d' % (v(V_FR + 24 * buf + 4 * b, 4), V_XA0 + ks, b * 2048)


def flat(groups):
    return [x for g in groups for x in g]


def spread(fill, lo, hi, groups):
    n = len(groups)
    for i, g in enumerate(groups):
        pos = lo + (i * (hi - lo + 1)) // n
        fill.setdefault(pos, []).extend(g)


def ffn_mainloop(P, xmode, rot, ts=None, mid=None, ts_chunks=True):
    for c in range(2):
        P.I('\n'.join(flat(dma_chunk('ffn', xmode, c, rot, False))))
        if c == 0 and mid:
            mid(P)
    if ts:
        ts(P, 'dma_issued')
    P.I('s_waitcnt vmcnt(12)\ns_barrier')
    if ts:
        ts(P, 'chunk0')
    for b in range(6):
        P.I(ffn_B_read(b, 0, 0))
    P.I('\n'.join(ffn_A_read(0, 0, 0) + ffn_A_read(1, 0, 1)))
    for c in range(8):
        mf, fill = [], {}
        for ks in range(2):
            kk = 2 * c + ks
            for a_ in range(6):
                n = 6 * kk + a_
                base = len(mf)
                for b in range(6):
                    mf.append(mfma(ffn_acc(a_, b), V_FR + 48 + 4 * (n % 3), V_FR + 24 * (kk % 2) + 4 * b, kk == 0))
                last_chunk = c == 7
                if ks == 1 and a_ == 4 and not last_chunk:
                    pre = ['s_waitcnt lgkmcnt(0)', 's_waitcnt vmcnt(%d)' % (12 if c < 6 else 0), 's_barrier']
                    fill.setdefault(base - 1, []).extend(pre)
                n2 = n + 2
                if n2 < 96:
                    a2, ks2 = n2 % 6, (n2 // 6) % 2
                    r = ffn_A_read(a2, ks2, n2 % 3)
                    fill.setdefault(base, []).append(r[0])
                    fill.setdefault(base + 1, []).append(r[1])
                    if ks == 1 and a_ == 3 and not last_chunk:
                        sw = stage_switch('ffn', c)
                        fill.setdefault(base + 2, []).extend(sw[:2])
                        fill.setdefault(base + 3, []).extend(sw[2:])
                if kk < 15:
                    if ks == 0 and a_ < 3:
                        for t in range(2):
                            fill.setdefault(base + 2 + t, []).append(ffn_B_read(2 * a_ + t, 1, (kk + 1) % 2))
                    if ks == 1 and a_ >= 4:
                        for t in range(3):
                            fill.setdefault(base + 2 + t, []).append(ffn_B_read(3 * (a_ - 4) + t, 0, (kk + 1) % 2))
        if c <= 5:
            grp = dma_chunk('ffn', xmode, (c + 2) % 3, rot, c == 5)
            spread(fill, 0, 56, grp)
        P.I('\n'.join(interleave(mf, fill)))
        if ts and ts_chunks:
            ts(P, 'c%d' % c)


def att_accq(t):
    return V_ACC + 4 * (t - 1)


def att_acck(t):
    return V_ACC + 48 + 4 * t


def att_accv(t):
    return V_ACC + 100 + 4 * t


def att_W_read(m, ks, buf):
    d = V_FR + 12 * buf + 4 * m
    base = 26624 + 4 * ks * 3072 + m * 1024
    return ['ds_read_b64_tr_b16 %s, v%d offset:%d' % (v(d, 2), V_WA, base),
            'ds_read_b64_tr_b16 %s, v%d offset:%d' % (v(d + 2, 2), V_WA, base + 3072)]


def att_X_read(t, ks, buf):
    return 'ds_read_b128 %s, v%d offset:%d' % (v(V_FR + 24 + 4 * buf, 4), V_XA0 + ks, t * 2048)


def att_mainloop(P, xmode, rot, ts=None, mid=None, ts_chunks=True):
    NXB = 5
    D = 3
    for c in range(2):
        P.I('\n'.join(flat(dma_chunk('att', xmode, c, rot, False))))
        if c == 0 and mid:
            mid(P)
    if ts:
        ts(P, 'dma_issued')
    P.I('s_waitcnt vmcnt(13)\ns_barrier')
    if ts:
        ts(P, 'chunk0')
    P.I('\n'.join(att_W_read(1, 0, 0) + att_W_read(2, 0, 0)))
    for t in range(D):
        P.I(att_X_read(t, 0, t % NXB))
    P.I('\n'.join(att_W_read(0, 0, 0)))
    for c in range(8):
        mf, fill = [], {}
        for ks in range(2):
            kk = 2 * c + ks
            wb = V_FR + 12 * (kk % 2)
            for t in range(13):
                n = 13 * kk + t
                base = len(mf)
                xb = V_FR + 24 + 4 * (n % NXB)
                mf.append(mfma(att_acck(t), wb + 4, xb, kk == 0))
                mf.append(mfma(att_accv(t), wb + 8, xb, kk == 0, swap=True))
                if t >= 1:
                    mf.append(mfma(att_accq(t), wb, xb, kk == 0))
                last_chunk = c == 7
                bar_t = 13 - D
                if ks == 1 and t == bar_t and not last_chunk:
                    pre = ['s_waitcnt lgkmcnt(0)', 's_waitcnt vmcnt(%d)' % (13 if c < 6 else 0), 's_barrier']
                    fill.setdefault(base - 1, []).extend(pre)
                if ks == 1 and t == bar_t - 1 and not last_chunk:
                    sw = stage_switch('att', c)
                    fill.setdefault(base + 1, []).extend(sw[:2])
                    fill.setdefault(base + 2, []).extend(sw[2:])
                n2 = n + D
                if n2 < 13 * 16:
                    t2, ks2 = n2 % 13, (n2 // 13) % 2
                    fill.setdefault(base, []).append(att_X_read(t2, ks2, n2 % NXB))
                if kk < 15:
                    order = [1, 2, 0]
                    if ks == 0 and 1 <= t <= 6:
                        m = order[(t - 1) // 2]
                        fill.setdefault(base + 1, []).append(att_W_read(m, 1, (kk + 1) % 2)[(t - 1) % 2])
                    if ks == 1 and t >= bar_t:
                        m = order[t - bar_t]
                        r = att_W_read(m, 0, (kk + 1) % 2)
                        fill.setdefault(base + 1, []).append(r[0])
                        fill.setdefault(base + 2, []).append(r[1])
        if c <= 5:
            grp = dma_chunk('att', xmode, (c + 2) % 3, rot, c == 5)
            spread(fill, 0, 60, grp)
        P.I('\n'.join(interleave(mf, fill)))
        if ts and ts_chunks:
            ts(P, 'c%d' % c)


def code_prefetch(P, dst, nbytes_per_lane=4):
    P.I('s_getpc_b64 s[84:85]')
    P.I('L_pfpc:')
    P.I('s_lshr_b32 s60, s2, 3\ns_lshl_b32 s60, s60, 2\ns_add_u32 s60, s60, s56\ns_lshl_b32 s60, s60, 8\nv_lshl_add_u32 v11, v1, 2, s60')
    P.I('v_min_u32 v11, L_code_end-L_pfpc-4, v11')
    P.I('global_load_dword v%d, v11, s[84:85]' % dst)
```

```python
from p1 import *
import struct

TP = 118 * 512
ACT_BYTES = 128 * TP
SRD_ACT = 16


def fbits(x):
    return '0x%08x' % struct.unpack('<I', struct.pack('<f', x))[0]


LOG2E = 1.4426950408889634
C0 = -2.0 * 0.7978845608028654 * LOG2E
C1 = C0 * 0.044715
V_ST = 11
V_C0, V_C1 = 12, 14
S_SO = 77
S_TB = 78


def store_addr_setup(P):
    P.I('''v_and_b32 v16, 15, v1
v_lshlrev_b32 v16, 4, v16
v_bfe_u32 v17, v1, 4, 1
v_mul_u32_u24 v17, %d, v17
v_lshrrev_b32 v18, 5, v1
v_lshl_add_u32 v16, v18, 8, v16
v_add_u32 v%d, v16, v17''' % (TP, V_ST))


def ffn_epilogue(P, aux='', fill=None):
    store_addr_setup(P)
    P.I('v_mov_b32 v12, %s\nv_mov_b32 v13, %s\nv_mov_b32 v14, %s\nv_mov_b32 v15, %s' % (fbits(C0), fbits(C0), fbits(C1), fbits(C1)))
    P.I('''s_lshr_b32 s60, s56, 1
s_mul_i32 s60, s60, 6
s_mul_i32 s61, s57, 12
s_add_u32 s60, s60, s61
s_mul_i32 s%d, s60, %d
s_and_b32 s60, s56, 1
s_mul_i32 s60, s60, 3
s_mul_i32 s61, s58, 6
s_add_u32 s60, s60, s61
s_sub_u32 s79, s60, 16''' % (S_TB, TP))
    T = V_FR
    blk = 0
    for uu in range(3):
        P.I('s_add_u32 s60, s79, %d\ns_cmp_lt_u32 s60, 118\ns_cselect_b32 s61, s%d, 0x7f000000\ns_lshl_b32 s60, s60, 9\ns_add_u32 s%d, s61, s60' % (uu, S_TB, S_SO))
        for bp in range(3):
            G = [ffn_acc(2 * uu, 2 * bp + (q >> 1)) + 2 * (q & 1) for q in range(4)]
            U = [ffn_acc(2 * uu + 1, 2 * bp + (q >> 1)) + 2 * (q & 1) for q in range(4)]
            t = [T + 16 * (blk % 2) + 2 * q for q in range(4)]
            o = T + 32 + 4 * (blk % 4)
            L = []
            L += ['v_pk_mul_f32 %s, %s, %s' % (v(t[q], 2), v(G[q], 2), v(G[q], 2)) for q in range(4)]
            L += ['v_pk_fma_f32 %s, %s, v[14:15], v[12:13]' % (v(t[q], 2), v(t[q], 2)) for q in range(4)]
            L += ['v_pk_mul_f32 %s, %s, %s' % (v(t[q], 2), v(t[q], 2), v(G[q], 2)) for q in range(4)]
            for q in range(4):
                L += ['v_exp_f32 v%d, v%d' % (t[q], t[q]), 'v_exp_f32 v%d, v%d' % (t[q] + 1, t[q] + 1)]
            L += ['v_pk_add_f32 %s, %s, 1.0 op_sel_hi:[1,0]' % (v(t[q], 2), v(t[q], 2)) for q in range(4)]
            for q in range(4):
                L += ['v_rcp_f32 v%d, v%d' % (t[q], t[q]), 'v_rcp_f32 v%d, v%d' % (t[q] + 1, t[q] + 1)]
            L += ['v_pk_mul_f32 %s, %s, %s' % (v(t[q], 2), v(t[q], 2), v(G[q], 2)) for q in range(4)]
            L += ['v_pk_mul_f32 %s, %s, %s' % (v(t[q], 2), v(t[q], 2), v(U[q], 2)) for q in range(4)]
            L += ['v_cvt_pk_bf16_f32 v%d, v%d, v%d' % (o + q, t[q], t[q] + 1) for q in range(4)]
            P.I('\n'.join(L))
            if fill:
                fill(P, blk)
            P.I('s_add_u32 s60, s%d, %d' % (S_SO, 2 * bp * TP))
            P.I('v_permlane16_swap_b32 v%d, v%d\nv_permlane16_swap_b32 v%d, v%d' % (o, o + 2, o + 1, o + 3))
            P.I('buffer_store_dwordx4 %s, v%d, s[16:19], s60 offen %s' % (v(o, 4), V_ST, aux))
            blk += 1


V_KP = 40
V_VP = 66
V_ONE = 92
V_MP0, V_MP1, V_MO0, V_MO1 = 96, 97, 98, 99
V_CE = 12
V_NEG = 14
V_AT = 16
S_MPAR, S_MO0, S_MO1, S_MFIRST = 64, 66, 68, 70


def att_epilogue(P, aux='', fill=None):
    store_addr_setup(P)
    P.I('''v_and_b32 v16, 15, v1
v_lshrrev_b32 v17, 4, v1
v_and_b32 v18, 1, v1
v_lshl_add_u32 v17, v17, 2, v18
v_add_u32 v19, 2, v17
v_cmp_eq_u32 s[64:65], 1, v18
v_cmp_le_u32 s[66:67], v17, v16
v_cmp_le_u32 s[68:69], v19, v16
v_mov_b32 v20, 0xffff
v_mov_b32 v21, 0xffff0000
v_cndmask_b32 v20, v20, v21, s[64:65]
v_cndmask_b32 v98, 0, v20, s[66:67]
v_cndmask_b32 v99, 0, v20, s[68:69]
v_xor_b32 v96, v98, v20
v_xor_b32 v97, v99, v20
v_mov_b32 v92, 0x3f803f80
v_mov_b32 v93, 0x3f803f80
v_mov_b32 v94, 0x3f803f80
v_mov_b32 v95, 0x3f803f80
v_mov_b32 v12, %s
v_mov_b32 v13, %s
v_mov_b32 v14, %s
s_cmp_eq_u32 s57, 0
s_cselect_b64 s[70:71], -1, 0
s_mul_i32 s60, s57, %d
s_lshl_b32 s61, s58, 2
s_add_u32 s61, s61, s56
s_lshl_b32 s61, s61, 9
s_add_u32 s%d, s60, s61''' % (fbits(0.25 * LOG2E), fbits(0.25 * LOG2E), fbits(-4e9), 12 * TP, S_SO))
    for t in range(13):
        k, vv = att_acck(t), att_accv(t)
        P.I('v_cvt_pk_bf16_f32 v%d, v%d, v%d\nv_cvt_pk_bf16_f32 v%d, v%d, v%d' % (V_KP + 2 * t, k, k + 1, V_KP + 2 * t + 1, k + 2, k + 3))
        P.I('v_cvt_pk_bf16_f32 v%d, v%d, v%d\nv_cvt_pk_bf16_f32 v%d, v%d, v%d' % (V_VP + 2 * t, vv, vv + 1, V_VP + 2 * t + 1, vv + 2, vv + 3))
    for t in range(1, 13):
        q = att_accq(t)
        P.I('v_cvt_pk_bf16_f32 v%d, v%d, v%d\nv_cvt_pk_bf16_f32 v%d, v%d, v%d' % (q, q, q + 1, q + 1, q + 2, q + 3))
    SP = lambda t: att_acck(t)
    SO = lambda t: att_accv(t)
    for t in range(1, 13):
        q = att_accq(t)
        P.I('v_mfma_f32_16x16x16bf16_1k %s, %s, %s, 0' % (v(SP(t), 4), v(V_KP + 2 * (t - 1), 2), v(q, 2)))
        P.I('v_mfma_f32_16x16x16bf16_1k %s, %s, %s, 0' % (v(SO(t), 4), v(V_KP + 2 * t, 2), v(q, 2)))
    G = 4
    for t0 in range(1, 13, G):
        ts_ = list(range(t0, t0 + G))
        S = {t: V_AT + 4 * (t - t0) for t in ts_}
        L = []
        for t in ts_:
            sp, so = SP(t), SO(t)
            L += ['v_cndmask_b32 v%d, v%d, v%d, s[64:65]' % (sp, sp, sp + 1),
                  'v_cndmask_b32 v%d, v%d, v%d, s[64:65]' % (sp + 2, sp + 2, sp + 3),
                  'v_cndmask_b32 v%d, v%d, v%d, s[64:65]' % (so, so, so + 1),
                  'v_cndmask_b32 v%d, v%d, v%d, s[64:65]' % (so + 2, so + 2, so + 3)]
            if t == 1:
                L += ['v_cndmask_b32 v%d, v%d, v14, s[70:71]' % (sp, sp),
                      'v_cndmask_b32 v%d, v%d, v14, s[70:71]' % (sp + 2, sp + 2)]
        for t in ts_:
            sp, so = SP(t), SO(t)
            L += ['v_cndmask_b32 v%d, v%d, v%d, s[66:67]' % (S[t], sp, so),
                  'v_cndmask_b32 v%d, v%d, v%d, s[68:69]' % (S[t] + 1, sp + 2, so + 2)]
        L += ['v_max_f32 v%d, v%d, v%d' % (S[t] + 2, S[t], S[t] + 1) for t in ts_]
        for sw in ('v_permlane16_swap_b32', 'v_permlane32_swap_b32'):
            L += ['v_mov_b32 v%d, v%d' % (S[t] + 3, S[t] + 2) for t in ts_]
            L += ['%s v%d, v%d' % (sw, S[t] + 2, S[t] + 3) for t in ts_]
            L += ['v_max_f32 v%d, v%d, v%d' % (S[t] + 2, S[t] + 2, S[t] + 3) for t in ts_]
        L += ['v_pk_add_f32 %s, %s, %s op_sel_hi:[1,0] neg_lo:[0,1] neg_hi:[0,1]' % (v(S[t], 2), v(S[t], 2), v(S[t] + 2, 2)) for t in ts_]
        L += ['v_pk_mul_f32 %s, %s, v[12:13]' % (v(S[t], 2), v(S[t], 2)) for t in ts_]
        for t in ts_:
            L += ['v_exp_f32 v%d, v%d' % (S[t], S[t]), 'v_exp_f32 v%d, v%d' % (S[t] + 1, S[t] + 1)]
        for t in ts_:
            L += ['v_cvt_pk_bf16_f32 v%d, v%d, v%d' % (S[t], S[t], S[t]), 'v_cvt_pk_bf16_f32 v%d, v%d, v%d' % (S[t] + 1, S[t] + 1, S[t] + 1)]
        for t in ts_:
            pb = att_accq(t)
            L += ['v_and_b32 v%d, v%d, v%d' % (pb, S[t], V_MP0), 'v_and_b32 v%d, v%d, v%d' % (pb + 1, S[t] + 1, V_MP1),
                  'v_and_b32 v%d, v%d, v%d' % (pb + 2, S[t], V_MO0), 'v_and_b32 v%d, v%d, v%d' % (pb + 3, S[t] + 1, V_MO1)]
        for t in ts_:
            pb = att_accq(t)
            L += ['v_mfma_f32_16x16x32_bf16 %s, %s, %s, 0' % (v(SO(t), 4), v(V_ONE, 4), v(pb, 4)),
                  'v_mfma_f32_16x16x32_bf16 %s, %s, %s, 0' % (v(SP(t), 4), v(V_VP + 2 * (t - 1), 4), v(pb, 4))]
        P.I('\n'.join(L))
        if fill:
            fill(P, (t0 - 1) // G)
        L = []
        L += ['v_rcp_f32 v%d, v%d' % (SO(t), SO(t)) for t in ts_]
        for t in ts_:
            L += ['v_pk_mul_f32 %s, %s, %s op_sel_hi:[1,0]' % (v(SP(t), 2), v(SP(t), 2), v(SO(t), 2)),
                  'v_pk_mul_f32 %s, %s, %s op_sel_hi:[1,0]' % (v(SP(t) + 2, 2), v(SP(t) + 2, 2), v(SO(t), 2))]
        for t in ts_:
            o = att_accq(t - ((t - 1) & 1)) + 2 * ((t - 1) & 1)
            L += ['v_cvt_pk_bf16_f32 v%d, v%d, v%d' % (o, SP(t), SP(t) + 1), 'v_cvt_pk_bf16_f32 v%d, v%d, v%d' % (o + 1, SP(t) + 2, SP(t) + 3)]
        for t in ts_[::2]:
            o = att_accq(t)
            L += ['s_add_u32 s60, s%d, %d' % (S_SO, (t - 1) * TP),
                  'v_permlane16_swap_b32 v%d, v%d' % (o, o + 2), 'v_permlane16_swap_b32 v%d, v%d' % (o + 1, o + 3),
                  'buffer_store_dwordx4 %s, v%d, s[16:19], s60 offen %s' % (v(o, 4), V_ST, aux)]
        P.I('\n'.join(L))
```

```python
from p1e import *

NKS = 15
RING = 9
WREG = RING * 4096
SRD_W2A = 20
SRD_W2B = 24
S_TB2, S_CB2 = 57, 58
S_WA, S_WB = 64, 65
S_M02 = 66
S_BO = 67
S_BL = 68
V2_WD = 2
V2_WA = 3
V2_B = 4
V2_X = 8
V2_RED = 9
V2_A = 16
V2_BF = 48
V2_XR = 112
V2_ACC = 128
V2_T = 192


def p2_decode(P):
    P.I('''s_and_b32 s60, s2, 7
s_lshl_b32 s60, s60, 2
s_lshr_b32 s61, s2, 6
s_add_u32 s%d, s60, s61
s_bfe_u32 s%d, s2, 0x30003''' % (S_TB2, S_CB2))


def p2_w_setup(P, ptr_wo=40, ptr_wd=48):
    for r, lim in ((SRD_W2A, 2), (SRD_W2B, 1)):
        P.I('s_cmp_lt_u32 s56, %d' % lim)
        P.I('s_cselect_b32 s%d, s%d, s%d\ns_cselect_b32 s%d, s%d, s%d' % (r, ptr_wo, ptr_wd, r + 1, ptr_wo + 1, ptr_wd + 1))
        P.I('s_mov_b32 s60, 0x80000\ns_cselect_b32 s%d, s60, 0x158000\ns_mov_b32 s%d, 0x20000' % (r + 2, r + 3))
        P.I('s_cselect_b32 s61, 0, 16\ns_mul_i32 s60, s56, 15\ns_sub_u32 s60, s60, s61\ns_lshl_b32 s60, s60, 15')
        P.I('s_lshl_b32 s61, s%d, 7\ns_add_u32 s%d, s60, s61' % (S_CB2, S_WA if r == SRD_W2A else S_WB))
    P.I('s_mul_i32 s%d, s56, %d' % (S_M02, WREG))
    P.I('''v_lshrrev_b32 v11, 3, v1
v_lshrrev_b32 v12, 2, v11
v_and_b32 v11, 3, v11
v_lshl_add_u32 v11, v12, 3, v11
v_lshrrev_b32 v12, 4, v1
v_lshlrev_b32 v13, 1, v12
v_and_b32 v14, 7, v1
v_xor_b32 v14, v14, v13
v_lshlrev_b32 v14, 4, v14
v_lshl_add_u32 v%d, v11, 10, v14''' % V2_WD)
    P.I('''v_bfe_u32 v13, v1, 2, 2
v_and_b32 v14, 3, v1
v_and_b32 v15, 1, v12
v_lshrrev_b32 v12, 1, v12
v_lshl_add_u32 v15, v15, 2, v13
v_lshrrev_b32 v13, 1, v15
v_lshlrev_b32 v13, 5, v13
v_lshl_add_u32 v13, v15, 7, v13
v_lshl_add_u32 v13, v14, 3, v13
v_lshl_add_u32 v13, v12, 11, v13
v_add_u32 v%d, s%d, v13
v_xor_b32 v10, 32, v%d
v_xor_b32 v14, 64, v%d
v_xor_b32 v15, 0x60, v%d''' % (V2_WA, S_M02, V2_WA, V2_WA, V2_WA))


WA_REG = [V2_WA, 10, 14, 15]


def p2_w_dma(i):
    slot = i % RING
    srd_, so = (SRD_W2A, S_WA) if i == 0 else (SRD_W2B, S_WB)
    out = []
    for jj in range(4):
        rowoff = (16 * (jj >> 1) + 4 * (jj & 1)) * 1024 + i * 32768
        g = []
        if jj == 0:
            g.append('s_add_u32 m0, s%d, %d' % (S_M02, slot * 4096))
        g.append('s_add_u32 s60, s%d, %d' % (so, rowoff - 1024 * jj))
        g.append('buffer_load_dwordx4 v%d, s[%d:%d], s60 offen offset:%d lds ;@def W%d' % (V2_WD, srd_, srd_ + 3, 1024 * jj, i))
        out.append(g)
    return out


def p2_a_read(i, c):
    d = V2_A + 16 * (i % 2) + 4 * c
    base = (i % RING) * 4096
    return ['ds_read_b64_tr_b16 %s, v%d offset:%d ;@use W%d' % (v(d, 2), WA_REG[c], base, i),
            'ds_read_b64_tr_b16 %s, v%d offset:%d ;@use W%d' % (v(d + 2, 2), WA_REG[c], base + 1024, i)]


def p2_b_setup(P):
    P.I('v_lshlrev_b32 v4, 4, v1\nv_add_u32 v5, %d, v4\nv_add_u32 v6, %d, v4\nv_add_u32 v7, %d, v4' % (TP, 2 * TP, 3 * TP))
    P.I('s_mul_i32 s60, s%d, %d\ns_mul_i32 s61, s56, %d\ns_add_u32 s%d, s60, s61' % (S_TB2, 4 * TP, NKS * 1024, S_BO))
    P.I('s_add_u32 s60, s%d, %d\ns_cmp_eq_u32 s56, 3\ns_cselect_b32 s%d, 0x7f000000, s60' % (S_BO, (NKS - 1) * 1024, S_BL))


def p2_b_load(i, aux=''):
    out = []
    for t in range(4):
        g = []
        if t == 0 and i < NKS - 1:
            g.append('s_add_u32 s61, s%d, %d' % (S_BO, i * 1024))
        so = 61 if i < NKS - 1 else S_BL
        g.append('buffer_load_dwordx4 %s, v%d, s[16:19], s%d offen %s' % (v(V2_BF + 16 * (i % 4) + 4 * t, 4), V2_B + t, so, aux))
        out.append(g)
    return out


def p2_x_setup(P):
    P.I('''v_and_b32 v11, 15, v1
v_lshrrev_b32 v12, 4, v1
v_lshlrev_b32 v11, 10, v11
v_lshl_add_u32 v13, v12, 3, v11
s_lshl_b32 s60, s%d, 2
s_add_u32 s60, s60, s56
s_lshl_b32 s60, s60, 14
s_lshl_b32 s61, s%d, 7
s_add_u32 s69, s60, s61''' % (S_TB2, S_CB2))
    for c in range(4):
        P.I('buffer_load_dwordx2 %s, v13, s[4:7], s69 offen offset:%d' % (v(V2_XR + 2 * c, 2), 32 * c))
    P.I('''v_and_b32 v13, 1, v12
v_lshl_add_u32 v13, v13, 5, v11
v_lshrrev_b32 v12, 1, v12
v_lshl_add_u32 v%d, v12, 4, v13
v_lshlrev_b32 v%d, 4, v1''' % (V2_X, V2_RED))


def acc2(c, t):
    return V2_ACC + 16 * t + 4 * c


def p2_main(P, aux='', pre_w=0, ts=None):
    D = 3
    for i in range(pre_w, min(RING, NKS)):
        pass
    first_w = max(pre_w, 0)
    seq = []
    for i in range(D):
        if i >= pre_w:
            seq += flat(p2_w_dma(i))
        seq += flat(p2_b_load(i, aux))
    P.I('\n'.join(seq))
    nxt_w = max(pre_w, D)
    for c in range(4):
        P.I('\n'.join(p2_a_read(0, c)))
    if ts:
        ts(P, 'p2_first')
    for i in range(NKS):
        mf, fill = [], {}
        for t in range(4):
            for c in range(4):
                mf.append('v_mfma_f32_16x16x32_bf16 %s, %s, %s, %s' % (v(acc2(c, t), 4), v(V2_A + 16 * (i % 2) + 4 * c, 4), v(V2_BF + 16 * (i % 4) + 4 * t, 4), '0' if i == 0 else v(acc2(c, t), 4)))
        grp = []
        if i + D < NKS:
            grp += p2_b_load(i + D, aux)
        nw = 0
        while nxt_w < NKS and nxt_w < i + RING and nw < 1:
            grp += p2_w_dma(nxt_w)
            nxt_w += 1
            nw += 1
        spread(fill, 0, 11, grp)
        if i + 1 < NKS:
            rd = []
            for c in range(4):
                rd += p2_a_read(i + 1, c)
            for n, r in enumerate(rd):
                fill.setdefault(4 + n, []).append(r)
        P.I('\n'.join(interleave(mf, fill)))


def p2_tail(P, aux=''):
    P.I('s_barrier\ns_nop 7')
    for w in range(4):
        pass
    for w in range(4):
        P.I('s_cmp_lg_u32 s56, %d\ns_cbranch_scc1 L_red%d' % (w, w))
        P.cond = True
        for t in range(4):
            if t == w:
                continue
            src = sum(1 for x in range(w) if x != t)
            for c in range(4):
                P.I('ds_write_b128 v%d, %s offset:%d' % (V2_RED, v(acc2(c, t), 4), (t * 3 + src) * 4096 + c * 1024))
        for c in range(4):
            for r in range(4):
                P.I('v_mov_b32 v%d, v%d' % (V2_T + 4 * c + r, acc2(c, w) + r))
        P.cond = False
        P.I('L_red%d:' % w)
    P.I('s_waitcnt lgkmcnt(0)\ns_barrier')
    P.I('s_mul_i32 s60, s56, 12288\nv_add_u32 v%d, s60, v%d' % (V2_RED, V2_RED))
    for sidx in range(3):
        for c in range(4):
            P.I('ds_read_b128 %s, v%d offset:%d' % (v(V2_ACC + 16 * sidx + 4 * c, 4), V2_RED, sidx * 4096 + c * 1024))
    for c in range(4):
        for h in range(2):
            x = V2_XR + 2 * c + h
            P.I('v_lshlrev_b32 v%d, 16, v%d\nv_and_b32 v%d, 0xffff0000, v%d' % (16 + 4 * c + 2 * h, x, 17 + 4 * c + 2 * h, x))
    for q in range(8):
        P.I('v_pk_add_f32 %s, %s, %s' % (v(V2_T + 2 * q, 2), v(V2_T + 2 * q, 2), v(16 + 2 * q, 2)))
    for sidx in range(3):
        for q in range(8):
            P.I('v_pk_add_f32 %s, %s, %s' % (v(V2_T + 2 * q, 2), v(V2_T + 2 * q, 2), v(V2_ACC + 16 * sidx + 2 * q, 2)))
    for c in range(4):
        P.I('v_cvt_pk_bf16_f32 v%d, v%d, v%d\nv_cvt_pk_bf16_f32 v%d, v%d, v%d' % (32 + 2 * c, V2_T + 4 * c, V2_T + 4 * c + 1, 33 + 2 * c, V2_T + 4 * c + 2, V2_T + 4 * c + 3))
    for cp in range(2):
        o = 32 + 4 * cp
        P.I('v_permlane16_swap_b32 v%d, v%d\nv_permlane16_swap_b32 v%d, v%d' % (o, o + 2, o + 1, o + 3))
    for cp in range(2):
        P.I('buffer_store_dwordx4 %s, v%d, s[28:31], s69 offen offset:%d %s' % (v(32 + 4 * cp, 4), V2_X, 64 * cp, aux))
```

```python
import sys
from p0 import *
from p2 import *

NAME = 'parallel_sum__sliding_local_dilated__geglu_ffn__prompt'
XN_OFF = 0
ACT_OFF = 0x400000
HEADER = open('cdna_kernels/%s.s.ref' % NAME).read().split('; Override launch')[0]


def srd_off(P, r, ptr, off, size):
    P.I('s_add_u32 s%d, s%d, 0x%x\ns_addc_u32 s%d, s%d, 0\ns_mov_b32 s%d, 0x%x\ns_mov_b32 s%d, 0x20000' % (r, ptr, off, r + 1, ptr + 1, r + 2, size, r + 3))


def kd(name, vgpr, accum):
    return '''.section .rodata,"a"
.p2align 6
.amdhsa_kernel %s
  .amdhsa_next_free_vgpr %d
  .amdhsa_next_free_sgpr 102
  .amdhsa_accum_offset %d
  .amdhsa_group_segment_fixed_size 0
  .amdhsa_kernarg_size 80
  .amdhsa_user_sgpr_count 2
  .amdhsa_user_sgpr_kernarg_segment_ptr 1
  .amdhsa_system_sgpr_workgroup_id_x 1
  .amdhsa_float_denorm_mode_32 3
.end_amdhsa_kernel
.text
''' % (name, vgpr, accum)


def head(name):
    return '.globl %s\n.p2align 8\n.type %s,@function\n' % (name, name)


def uniq(txt, tag):
    import re
    return re.sub(r'\bL_(\w+)', lambda m: 'L%s_%s' % (tag, m.group(1)), txt)


class TS:
    def __init__(self, on):
        self.on, self.names = on, []

    def __call__(self, P, name):
        if not self.on:
            return
        i = len(self.names)
        self.names.append(name)
        P.I('s_memtime s[80:81]\ns_waitcnt lgkmcnt(0)\nv_accvgpr_write_b32 a%d, s80' % (200 + i))

    def start(self, P):
        if self.on:
            P.I('s_memtime s[80:81]\ns_memrealtime s[82:83]')

    def save_start(self, P):
        if self.on:
            P.I('v_accvgpr_write_b32 a230, s80\nv_accvgpr_write_b32 a231, s82')

    def dump(self, P, slot):
        if not self.on:
            return
        P.I('s_waitcnt vmcnt(0)\ns_memtime s[80:81]\ns_memrealtime s[82:83]\ns_waitcnt lgkmcnt(0)\nv_accvgpr_write_b32 a228, s80\nv_accvgpr_write_b32 a229, s82')
        srd_off(P, 32, 54, 0x4000000 + slot * 0x40000, 0x40000)
        P.I('s_lshl_b32 s60, s2, 9\ns_lshl_b32 s61, s56, 7\ns_add_u32 s60, s60, s61')
        for i in range(32):
            P.I('v_accvgpr_read_b32 v12, a%d\nv_mov_b32 v13, %d\nbuffer_store_dword v12, v13, s[32:35], s60 offen' % (200 + i, 4 * i))


def prologue(P, name, ts):
    P.I(name + ':')
    ts.start(P)
    P.I('s_load_dwordx16 s[36:51], s[0:1], 0\ns_load_dwordx4 s[52:55], s[0:1], 64')
    P.I('s_cmp_ge_u32 s2, 256\ns_cbranch_scc1 L_end')
    lane_decode(P)
    code_prefetch(P, 100)


def k0(name, timing=False):
    P = Prog(); ts = TS(timing)
    prologue(P, name, ts)
    P.I('s_lshl_b32 s60, s2, 2\ns_add_u32 s60, s60, s56\ns_lshl_b32 s60, s60, 11\nv_lshlrev_b32 v2, 4, v1')
    P.I('s_waitcnt lgkmcnt(0)')
    ts.save_start(P)
    srd(P, SRD_X, 36, 2048 * 1024)
    srd_off(P, 8, 54, XN_OFF, 2048 * 1024)
    P.I('buffer_load_dwordx4 v[4:7], v2, s[4:7], s60 offen\nbuffer_load_dwordx4 v[8:11], v2, s[4:7], s60 offen offset:1024')
    ln_rows(P, [4, 8], [12, 20], 8, 60, 2)
    ts.dump(P, 0)
    P.I('L_end:\ns_endpgm\nL_code_end:')
    return uniq(P.finalize(), '0'), ts.names


def k1(name, timing=False, rot=None):
    P = Prog(); ts = TS(timing)
    prologue(P, name, ts)
    role_decode(P)
    P.I('s_waitcnt lgkmcnt(0)')
    ts.save_start(P)
    srd_off(P, SRD_X, 54, XN_OFF, 2048 * 1024)
    srd_off(P, SRD_ACT, 54, ACT_OFF, ACT_BYTES)
    P.I('s_cmp_ge_u32 s59, 253\ns_cbranch_scc1 L_end')
    P.I('s_cmp_lt_u32 s58, 8\ns_cbranch_scc1 L_att')
    for role in ('ffn', 'att'):
        ts.names.clear()
        if role == 'att':
            P.I('L_att:')
            srd(P, SRD_WA, 38, 512 * 3072)
        else:
            srd(P, SRD_WA, 44, 512 * 2752)
            srd(P, SRD_WB, 46, 512 * 2752)
        x_dma_setup(P, role, 'raw')
        w_dma_setup(P, role)
        rot_init(P, role, 'raw', rot)
        ts(P, 'setup')
        (ffn_mainloop if role == 'ffn' else att_mainloop)(P, 'raw', rot, ts, lambda P: frag_addr_setup(P, role), False)
        ts(P, 'main')
        (ffn_epilogue if role == 'ffn' else att_epilogue)(P)
        ts(P, 'epi')
        if role == 'ffn':
            P.I('s_branch L_done')
    P.I('L_done:')
    ts.dump(P, 1)
    P.I('L_end:\ns_endpgm\nL_code_end:')
    return uniq(P.finalize(), '1'), ts.names


def k2(name, timing=False):
    P = Prog(); ts = TS(timing)
    prologue(P, name, ts)
    p2_decode(P)
    P.I('s_waitcnt lgkmcnt(0)')
    ts.save_start(P)
    srd(P, SRD_X, 36, 2048 * 1024)
    srd_off(P, SRD_ACT, 54, ACT_OFF, ACT_BYTES)
    srd(P, SRD_OUT, 50, 2048 * 1024)
    p2_w_setup(P)
    p2_b_setup(P)
    ts(P, 'setup')
    p2_x_setup(P)
    p2_main(P, ts=ts)
    ts(P, 'main')
    p2_tail(P)
    ts.dump(P, 2)
    P.I('L_end:\ns_endpgm\nL_code_end:')
    return uniq(P.finalize(), '2'), ts.names


def build(timing=False, rot=None):
    n0, n1, n2 = 'ln_kernel', 'gemm1_kernel', NAME + '_kernel'
    t0, s0 = k0(n0, timing)
    t1, s1 = k1(n1, timing, rot)
    t2, s2 = k2(n2, timing)
    txt = HEADER
    txt += '; @launch kernel=%s grid=(256,1,1) block=(256,1,1) lds=0\n' % n0
    txt += '; @launch kernel=%s grid=(256,1,1) block=(256,1,1) lds=153600\n' % n1
    txt += '; @launch kernel=%s grid=(256,1,1) block=(256,1,1) lds=%d\n' % (n2, 4 * WREG)
    txt += '.amdgcn_target "amdgcn-amd-amdhsa--gfx950"\n.text\n'
    acc = 512 if timing else 256
    txt += head(n0) + t0 + kd(n0, acc if timing else 104, 256 if timing else 104)
    txt += head(n1) + t1 + kd(n1, acc, 256)
    txt += head(n2) + t2 + kd(n2, acc, 256)
    return txt, [s0, s1, s2]


if __name__ == '__main__':
    txt, names = build()
    out = sys.argv[1] if len(sys.argv) > 1 else 'cdna_kernels/%s.s' % NAME
    open(out, 'w').write(txt)
    print('wrote', out, len(txt))
```

```python
import gen_a
from gen_a import *
def probe_kernel(expr, scale):
    P = Prog()
    P.I('probe_kernel:')
    P.I('s_load_dwordx4 s[52:55], s[0:1], 64')
    P.I('s_cmp_ge_u32 s2, 1\ns_cbranch_scc1 L_end')
    P.I('v_and_b32 v1, 63, v0\ns_waitcnt lgkmcnt(0)')
    srd_off(P, 32, 54, 0x4000000, 0x100000)
    for slot in range(3):
        for q in range(4):
            P.I('v_add_u32 v2, %d, v1' % (64*q))
            if slot == 1 and q == 3:
                for bad in (239, 247, 255):
                    P.I('v_cmp_eq_u32 vcc, %d, v2\nv_cndmask_b32 v2, v2, v1, vcc' % bad)
            P.I('v_lshlrev_b32 v2, 9, v2\nv_add_u32 v2, %d, v2' % (slot*0x40000))
            P.I('buffer_load_dwordx4 v[%d:%d], v2, s[32:35], 0 offen offset:112' % (8+4*q, 11+4*q))
        for q in range(4):
            P.I('v_sub_u32 v%d, v%d, v%d' % (8+4*q, 8+4*q, 10+4*q))
        P.I('v_min_u32 v11, v11, v15\nv_min_u32 v19, v19, v23\nv_min_u32 v11, v11, v19')
        P.I('v_max_u32 v9, v9, v13\nv_max_u32 v17, v17, v21\nv_max_u32 v9, v9, v17')
        P.I('v_max_u32 v8, v8, v12\nv_max_u32 v16, v16, v20\nv_max_u32 v8, v8, v16')
        a, b, c = 10+3*slot, 11+3*slot, 12+3*slot
        P.I('s_mov_b32 s%d, -1\ns_mov_b32 s%d, 0\ns_mov_b32 s%d, 0' % (a, b, c))
        for l in range(64):
            P.I('v_readlane_b32 s4, v11, %d\nv_readlane_b32 s5, v9, %d\nv_readlane_b32 s6, v8, %d\ns_nop 3\ns_min_u32 s%d, s%d, s4\ns_max_u32 s%d, s%d, s5\ns_max_u32 s%d, s%d, s6' % (l, l, l, a, a, b, b, c, c))
    P.I(expr)
    P.I('s_mul_i32 s20, s20, %d\ns_min_u32 s20, s20, 100000' % scale)
    P.I('s_memrealtime s[22:23]\ns_waitcnt lgkmcnt(0)\ns_mov_b32 s24, s22')
    P.I('L_spin:')
    P.I('s_memrealtime s[22:23]\ns_waitcnt lgkmcnt(0)\ns_sub_u32 s25, s22, s24\ns_cmp_lt_u32 s25, s20\ns_cbranch_scc1 L_spin')
    P.I('L_end:\ns_endpgm')
    return head('probe_kernel') + uniq(P.finalize(), 'p') + kd('probe_kernel', 32, 32)
def mk(name, txt, expr, scale):
    lines = txt.split('\n')
    L = [i for i,l in enumerate(lines) if l.startswith('; @launch')]
    ls = lines[:L[-1]+1] + ['; @launch kernel=probe_kernel grid=(1,1,1) block=(64,1,1) lds=0'] + lines[L[-1]+1:]
    open('var/%s.s' % name, 'w').write('\n'.join(ls) + probe_kernel(expr, scale))
if __name__ == '__main__':
    txt, _ = gen_a.build(True)
    mk('p0', txt, 's_mov_b32 s20, 0', 1)
    mk('p1', txt, 's_sub_u32 s20, s11, s10', 4)
    mk('p2', txt, 's_sub_u32 s20, s13, s10', 4)
    mk('p3', txt, 's_sub_u32 s20, s14, s13', 4)
    mk('p4', txt, 's_sub_u32 s20, s17, s10', 4)
    mk('p5', txt, 's_lshr_b32 s20, s15, 2', 1)
```

```python
import re

REG_RE = re.compile(r'^(-|abs\()?([vas])(\d+)\)?$')
RNG_RE = re.compile(r'^(-)?([vas])\[(\d+):(\d+)\]$')

TRANS = ('v_exp_f32', 'v_log_f32', 'v_rcp_f32', 'v_rsq_f32', 'v_sqrt_f32', 'v_sin_f32', 'v_cos_f32', 'v_rcp_iflag_f32')


def regs_of(op):
    op = op.strip()
    m = REG_RE.match(op)
    if m:
        return [(m.group(2), int(m.group(3)))]
    m = RNG_RE.match(op)
    if m:
        return [(m.group(2), i) for i in range(int(m.group(3)), int(m.group(4)) + 1)]
    if op == 'vcc':
        return [('s', 'vcc')]
    if op in ('vcc_lo', 'vcc_hi'):
        return [('s', 'vcc')]
    if op in ('exec', 'exec_lo', 'exec_hi'):
        return [('s', 'exec')]
    if op == 'm0':
        return [('s', 'm0')]
    return []


def split_ops(s):
    out, depth, cur = [], 0, ''
    for ch in s:
        if ch in '[(':
            depth += 1
        if ch in '])':
            depth -= 1
        if ch == ',' and depth == 0:
            out.append(cur.strip())
            cur = ''
        else:
            cur += ch
    if cur.strip():
        out.append(cur.strip())
    return out


class Ins:
    __slots__ = ('text', 'mn', 'ops', 'mods', 'kind', 'defs', 'uses', 'cond', 'A', 'B', 'C', 'D', 'passes', 'note', 'wide_data')

    def __init__(self, text, cond=False):
        self.text = text.strip()
        self.cond = cond
        self.note = None
        t = self.text.split(';')[0].strip()
        parts = t.split(None, 1)
        self.mn = mn = parts[0]
        rest = parts[1] if len(parts) > 1 else ''
        ops = split_ops(rest)
        mods = ''
        if ops:
            last = ops[-1].split(None, 1)
            if len(last) > 1 and not mn.startswith('s_waitcnt'):
                ops[-1] = last[0]
                mods = last[1]
        self.ops, self.mods = ops, mods
        self.defs, self.uses = set(), set()
        self.A = self.B = self.C = self.D = None
        self.passes = 0
        self.wide_data = set()
        R = lambda i: set(regs_of(ops[i])) if i < len(ops) else set()
        allr = lambda lo: set().union(*[R(i) for i in range(lo, len(ops))]) if len(ops) > lo else set()
        if t.endswith(':'):
            self.kind = 'label'
        elif mn.startswith('.'):
            self.kind = 'dir'
        elif mn.startswith('v_mfma'):
            self.kind = 'mfma'
            self.D, self.A, self.B, self.C = R(0), R(1), R(2), R(3)
            self.defs = set(self.D)
            self.uses = self.A | self.B | self.C
            self.passes = 8 if '32x32' in mn else 4
        elif mn.startswith('ds_read') or mn.startswith('ds_bpermute') or mn.startswith('ds_swizzle') or mn.startswith('ds_permute'):
            self.kind = 'ds'
            self.defs = R(0)
            self.uses = allr(1)
        elif mn.startswith('ds_write') or mn.startswith('ds_add'):
            self.kind = 'ds'
            self.uses = allr(0)
        elif mn.startswith('buffer_load') and re.search(r'\blds\b', mods):
            self.kind = 'dma'
            self.uses = allr(0) | {('s', 'm0')}
        elif mn.startswith('buffer_load') or mn.startswith('global_load'):
            self.kind = 'vm'
            self.defs = R(0)
            self.uses = allr(1)
        elif mn.startswith('buffer_store'):
            self.kind = 'vm'
            self.uses = allr(0)
            if 'x3' in mn or 'x4' in mn:
                self.wide_data = R(0)
        elif mn.startswith('global_store'):
            self.kind = 'vm'
            self.uses = allr(0)
            if 'x3' in mn or 'x4' in mn:
                self.wide_data = R(1)
        elif mn.startswith('buffer_atomic') or mn.startswith('global_atomic'):
            self.kind = 'vm'
            self.uses = allr(0)
            if 'sc0' in mods:
                self.defs = R(0)
        elif mn in ('buffer_inv', 'buffer_wbl2'):
            self.kind = 'vm'
        elif mn.startswith('s_load') or mn.startswith('s_buffer_load') or mn in ('s_memtime', 's_memrealtime'):
            self.kind = 'smem'
            self.defs = R(0)
            self.uses = allr(1)
        elif mn == 's_waitcnt':
            self.kind = 'wait'
        elif mn == 's_barrier':
            self.kind = 'barrier'
        elif mn == 's_nop':
            self.kind = 'nop'
        elif mn.startswith('s_cbranch') or mn in ('s_branch', 's_endpgm', 's_setpc_b64'):
            self.kind = 'branch'
            if 'vcc' in mn:
                self.uses = {('s', 'vcc')}
            if 'exec' in mn:
                self.uses = {('s', 'exec')}
        elif mn.startswith('s_cmp') or mn.startswith('s_bitcmp'):
            self.kind = 'salu'
            self.uses = allr(0)
        elif mn in ('s_sleep', 's_setprio', 's_sethalt'):
            self.kind = 'salu'
        elif mn.startswith('s_'):
            self.kind = 'salu'
            self.defs = R(0)
            self.uses = allr(1)
            if 'saveexec' in mn:
                self.defs |= {('s', 'exec')}
                self.uses |= {('s', 'exec')}
            if mn in ('s_addk_i32', 's_mulk_i32', 's_cmov_b32', 's_cmov_b64'):
                self.uses |= R(0)
        elif mn.startswith('v_'):
            base = re.sub(r'_(e32|e64|dpp|sdwa)$', '', mn)
            self.kind = 'trans' if base in TRANS else 'valu'
            if base.startswith('v_permlane') and 'swap' in base:
                self.defs = R(0) | R(1)
                self.uses = R(0) | R(1)
            elif base.startswith('v_add_co') or base.startswith('v_sub_co') or base.startswith('v_addc_co'):
                self.defs = R(0) | R(1)
                self.uses = allr(2)
            else:
                self.defs = R(0)
                self.uses = allr(1)
                if base in ('v_fmac_f32', 'v_dot2c_f32_bf16', 'v_writelane_b32', 'v_pk_fmac_f16'):
                    self.uses |= R(0)
                if 'dpp' in mn or 'row_' in mods or 'quad_perm' in mods:
                    self.uses |= R(0)
                if base == 'v_cndmask_b32' and len(ops) == 3:
                    self.uses |= {('s', 'vcc')}
            self.uses |= {('s', 'exec')}
        else:
            raise ValueError('unknown instruction: ' + text)
        for kind, name in re.findall(r'@(def|use) (\w+)', self.text):
            (self.defs if kind == 'def' else self.uses).add(('L', name))

    @property
    def is_valu(self):
        return self.kind in ('valu', 'trans')

    @property
    def is_dpp(self):
        return self.is_valu and ('_dpp' in self.mn or 'row_' in self.mods or 'quad_perm' in self.mods)


def parse_wait(ins):
    vm = lg = None
    m = re.search(r'vmcnt\((\d+)\)', ins.text)
    if m:
        vm = int(m.group(1))
    m = re.search(r'lgkmcnt\((\d+)\)', ins.text)
    if m:
        lg = int(m.group(1))
    return vm, lg


def required_gap(p, c):
    need = 0
    vdefs = {r for r in p.defs if r[0] in 'va'}
    sdefs = {r for r in p.defs if r[0] == 's'}
    if p.is_valu:
        if c.kind == 'mfma' and (vdefs & c.uses):
            need = max(need, 2)
        if c.is_valu:
            if c.mn.startswith('v_permlane') and (vdefs & c.uses):
                need = max(need, 2)
            if c.is_dpp and (vdefs & c.uses):
                need = max(need, 2)
            if (c.mn.startswith('v_readfirstlane') or c.mn.startswith('v_readlane')) and (vdefs & c.uses):
                need = max(need, 1)
            if p.kind == 'trans' and (vdefs & c.uses):
                need = max(need, 1)
            s2 = sdefs - {('s', 'exec')}
            if s2 & c.uses:
                need = max(need, 4 if c.mn.startswith('v_readlane') or c.mn.startswith('v_writelane') else 2)
            if ('sdwa' in p.mn or 'op_sel' in p.mods) and not p.mn.startswith('v_pk_') and (vdefs & (c.uses | c.defs)):
                need = max(need, 1)
        if c.kind in ('vm', 'dma') and (sdefs & c.uses):
            need = max(need, 5)
        if c.kind == 'branch' and (sdefs & c.uses):
            need = max(need, 5)
    if p.kind == 'mfma':
        n_rd = 8 if p.passes == 4 else 12
        if c.kind == 'mfma':
            if p.D & (c.A | c.B):
                need = max(need, n_rd)
            if p.D & c.C and not (p.D == c.C and p.passes == c.passes):
                need = max(need, 6 if p.passes == 4 else 10)
            if p.D & c.D and not (p.D == c.C):
                need = max(need, n_rd)
        elif c.kind in ('valu', 'trans', 'vm', 'ds', 'dma'):
            if p.D & (c.uses | c.defs):
                need = max(need, n_rd)
            if c.is_valu and (p.C & c.defs):
                need = max(need, 3 if p.passes == 4 else 7)
            if c.kind in ('vm', 'ds') and (p.C & c.defs):
                need = max(need, 3 if p.passes == 4 else 7)
    if p.kind == 'salu' and ('s', 'm0') in p.defs and c.kind == 'dma':
        need = max(need, 1)
    if p.kind == 'vm' and p.wide_data:
        if p.wide_data & c.defs:
            need = max(need, 2)
    return need


class Prog:
    def __init__(self):
        self.items = []
        self.cond = False

    def I(self, text, cond=None):
        for line in text.split('\n'):
            line = line.strip()
            if not line or line.startswith(';'):
                continue
            self.items.append(Ins(line, self.cond if cond is None else cond))

    def cond_begin(self):
        self.items.append(Ins('.cond_begin'))
        self.cond = True

    def cond_end(self):
        self.items.append(Ins('.cond_end'))
        self.cond = False

    def new_path(self):
        self.items.append(Ins('.reset_queues'))

    def extend(self, insts):
        self.items.extend(insts)

    def finalize(self, check_only=False):
        out = []
        vmq, lgq = [], []
        hist = []

        def count_after(q, idx):
            return sum(1 for x in q[idx + 1:] if not x.cond)

        def apply_wait(vm, lg):
            nonlocal vmq, lgq
            if vm is not None:
                vmq = [x for i, x in enumerate(vmq) if count_after(vmq, i) < vm]
            if lg is not None:
                if any(x.kind == 'smem' for x in lgq):
                    if lg == 0:
                        lgq = []
                else:
                    lgq = [x for i, x in enumerate(lgq) if count_after(lgq, i) < lg]

        def emit(ins):
            out.append(ins)
            if ins.kind in ('label', 'dir'):
                return
            st = 1
            if ins.kind == 'nop':
                st = int(ins.ops[0], 0) + 1
            hist.append((ins, st))
            if len(hist) > 24:
                hist.pop(0)

        saved = []
        for ins in self.items:
            if ins.text == '.cond_begin':
                saved.append((list(vmq), list(lgq)))
                continue
            if ins.text == '.cond_end':
                v0, l0 = saved.pop()
                vmq = v0 + [x for x in vmq if x not in v0]
                lgq = l0 + [x for x in lgq if x not in l0]
                continue
            if ins.text == '.reset_queues':
                vmq, lgq = [], []
                hist.clear()
                continue
            if ins.kind == 'label' or ins.kind == 'dir':
                emit(ins)
                continue
            if ins.kind == 'wait':
                vm, lg = parse_wait(ins)
                apply_wait(vm, lg)
                emit(ins)
                continue
            touched = ins.uses | ins.defs
            need_vm = need_lg = None
            for i, x in enumerate(vmq):
                if x.defs & touched:
                    if ins.kind in ('vm', 'dma') and not (x.defs & ins.uses):
                        continue
                    n = count_after(vmq, i)
                    need_vm = n if need_vm is None else min(need_vm, n)
            for i, x in enumerate(lgq):
                if x.defs & touched:
                    if ins.kind == 'ds' and x.kind == 'ds' and not (x.defs & ins.uses):
                        continue
                    n = count_after(lgq, i)
                    if any(y.kind == 'smem' for y in lgq):
                        n = 0
                    need_lg = n if need_lg is None else min(need_lg, n)
            if need_vm is not None or need_lg is not None:
                s = 's_waitcnt'
                if need_vm is not None:
                    need_vm = min(need_vm, 63)
                    s += ' vmcnt(%d)' % need_vm
                if need_lg is not None:
                    need_lg = min(need_lg, 15)
                    s += ' lgkmcnt(%d)' % need_lg
                w = Ins(s)
                if need_vm is not None:
                    last = max(i for i, x in enumerate(vmq) if x.defs & touched and not (ins.kind in ('vm', 'dma') and not (x.defs & ins.uses)))
                    vmq = vmq[last + 1:]
                if need_lg is not None:
                    if any(y.kind == 'smem' for y in lgq):
                        lgq = []
                    else:
                        cand = [i for i, x in enumerate(lgq) if x.defs & touched and not (ins.kind == 'ds' and x.kind == 'ds' and not (x.defs & ins.uses))]
                        lgq = lgq[max(cand) + 1:]
                emit(w)
            gap = 0
            need = 0
            for p, st in reversed(hist):
                r = required_gap(p, ins)
                if r > gap:
                    need = max(need, r - gap)
                gap += st
                if gap >= 13:
                    break
            while need > 0:
                n = min(need, 16)
                emit(Ins('s_nop %d' % (n - 1)))
                need -= n
            emit(ins)
            if ins.kind in ('vm', 'dma'):
                vmq.append(ins)
            elif ins.kind in ('ds', 'smem'):
                lgq.append(ins)
        self.final = out
        return '\n'.join(('' if x.kind == 'label' else '  ') + x.text for x in out) + '\n'

    def stats(self):
        from collections import Counter
        return Counter(x.kind for x in self.final)


def v(a, n=1):
    return 'v%d' % a if n == 1 else 'v[%d:%d]' % (a, a + n - 1)


def a(x, n=1):
    return 'a%d' % x if n == 1 else 'a[%d:%d]' % (x, x + n - 1)


def s(x, n=1):
    return 's%d' % x if n == 1 else 's[%d:%d]' % (x, x + n - 1)


def interleave(mfmas, fillers):
    out = list(fillers.get(-1, []))
    for i, m in enumerate(mfmas):
        out.append(m)
        out.extend(fillers.get(i, []))
    return out
```

```python
from collections import Counter


MODE = ['rect']
ROT = [[0] * 8]


def placement_cols():
    X = {k: [(rb, j) for j in (2 * k, 2 * k + 1) for rb in range(11)] for k in range(8)}
    rest = [(rb, j) for j in range(16, 22) for rb in range(11)]
    sizes = [8, 8, 8, 9, 8, 8, 8, 9]
    pos = 0
    for k in range(8):
        X[k] += rest[pos:pos + sizes[k]]
        pos += sizes[k]
    light = [(rb, 22) for rb in range(11)]
    for k in range(8):
        while len(X[k]) < 32 and light:
            X[k].append(light.pop())
    seen = Counter(t for m in X.values() for t in m)
    assert len(seen) == 253 and max(seen.values()) == 1 and max(len(m) for m in X.values()) <= 32
    return X


def placement():
    if MODE[0] == 'cols':
        return placement_cols()
    X = {k: [] for k in range(8)}
    for k in range(4):
        X[k] = [(rb, j) for rb in range(6) for j in range(5 * k, 5 * k + 5)]
    for k in range(3):
        X[4 + k] = [(rb, j) for rb in range(6, 11) for j in range(6 * k, 6 * k + 6)]
    X[7] = [(rb, j) for rb in range(6, 11) for j in range(18, 22)] + [(rb, j) for rb in range(6) for j in (20, 21)]
    for rb in range(6):
        X[(rb + 2) % 4 if rb < 4 else rb - 2].append((rb, 22))
    for rb in range(6, 11):
        X[4 + (rb - 6) % 3].append((rb, 22))
    seen = Counter(t for m in X.values() for t in m)
    assert len(seen) == 253 and max(seen.values()) == 1 and max(len(m) for m in X.values()) <= 32
    return X


def roles():
    r = [None] * 256
    for k, mem in placement().items():
        for q, t in enumerate(mem):
            r[q * 8 + k] = t
    return r


def role_of(wg):
    return roles()[wg]


def assign():
    R = roles()
    xm = [0] * 256
    wm = [0] * 256
    for x in range(8):
        mem = [(wg, R[wg][0], R[wg][1]) for wg in range(x, 256, 8) if R[wg]]
        load = {wg: [] for wg, _, _ in mem}
        xs, ws = {}, {}
        for wg, rb, j in mem:
            if j != 22 or not any(r2 == rb and j2 != 22 for _, r2, j2 in mem):
                xs.setdefault(rb, []).append(wg)
            ws.setdefault(j, []).append(wg)
        for k in range(8):
            items = [('x', key, c) for key, c in xs.items()] + [('w', key, c) for key, c in ws.items()]
            items.sort(key=lambda t: len(t[2]))
            for kind, key, cand in items:
                if len(cand) < 2:
                    continue
                def cost(wg):
                    l = load[wg]
                    slot = lambda kk: 0 if kk < 2 else kk
                    same = sum(1 for q in l if slot(q) == slot(k))
                    near = sum(1 for q in l if abs(slot(q) - slot(k)) == 1 and k >= 2)
                    return (same, len(l) + 0.6 * near, wg)
                best = min(cand, key=cost)
                load[best].append(k)
                if kind == 'x':
                    xm[best] |= 1 << k
                else:
                    wm[best] |= 1 << k
    return xm, wm


def table():
    R = roles()
    xm, wm = assign()
    has_att = {x: any(t and t[1] < 8 for t in R[x::8]) for x in range(8)}
    out = []
    for wg in range(256):
        if R[wg] is None:
            out.append(0x80)
        else:
            rb, j = R[wg]
            out.append(rb | (int(has_att[wg & 7]) << 4) | (j << 8) | (ROT[0][wg & 7] << 13) | (xm[wg] << 16) | (wm[wg] << 24))
    return out


if __name__ == '__main__':
    xm, wm = assign()
    R = roles()
    c = Counter(bin(xm[w]).count('1') + bin(wm[w]).count('1') for w in range(256))
    print(sorted(c.items()))
    both = sum(1 for w in range(256) if (xm[w] & wm[w]) >> 2)
    init = Counter(bin((xm[w] & 3)).count('1') + bin(wm[w] & 3).count('1') for w in range(256))
    print('both same chunk', both, 'initial', init)
    for x in (0, 4, 7):
        for w in range(x, 256, 8):
            print(x, R[w], format(xm[w], '08b'), format(wm[w], '08b'))
```

```python
from p1b import *
from p1e import TP, ACT_BYTES, fbits, LOG2E, C0, C1, V_ST
from p0 import wave_sum, rnd_bf16
import p2

ACT_OFF = 0x400000
STATS_OFF = 0x100000
FLAGS_OFF = 0x200000
SRD_AUX = 28
SRD_DBG = 32
L_NM, L_RS = 153600, 153600 + 1024
LDS_BYTES = 153600 + 2048
V_ONES = 16
SPIN_MAX = 400000


def srd_off(P, r, ptr, off, size):
    P.I('s_add_u32 s%d, s%d, 0x%x\ns_addc_u32 s%d, s%d, 0\ns_mov_b32 s%d, 0x%x\ns_mov_b32 s%d, 0x20000' % (r, ptr, off, r + 1, ptr + 1, r + 2, size, r + 3))


def store_addr_setup(P):
    P.I('''v_and_b32 v12, 15, v1
v_lshlrev_b32 v12, 4, v12
v_bfe_u32 v13, v1, 4, 1
v_mul_u32_u24 v13, %d, v13
v_lshrrev_b32 v14, 5, v1
v_lshl_add_u32 v12, v14, 8, v12
v_add_u32 v%d, v12, v13''' % (TP, V_ST))


XR0, XR1 = 16, 20
XF0, XF1 = 40, 48


def p0_loads(P, has_flag=True):
    P.I('''s_lshl_b32 s60, s2, 2
s_add_u32 s60, s60, s56
s_lshl_b32 s60, s60, 11
v_lshlrev_b32 v14, 4, v1
buffer_load_dwordx4 v[16:19], v14, s[4:7], s60 offen
buffer_load_dwordx4 v[20:23], v14, s[4:7], s60 offen offset:1024''')


def flag_offset(P, dst):
    P.I('s_mul_i32 s%d, s57, 23\ns_add_u32 s%d, s%d, s58\ns_lshl_b32 s%d, s%d, 7\ns_lshl_b32 s63, s56, 2\ns_add_u32 s%d, s%d, s63\ns_add_u32 s%d, s%d, 0x%x' % ((dst,) * 9 + (FLAGS_OFF - STATS_OFF,)))


def flag_store(P, val):
    P.I('v_mov_b32 v24, %d\nv_mov_b32 v25, 0\ns_mov_b64 exec, 1' % val)
    P.I('buffer_store_dword v24, v25, s[28:31], s62 offen sc0 sc1')
    P.I('s_mov_b64 exec, -1')


def p0_stats(P):
    X, F, S, Q, T = [XR0, XR1], [XF0, XF1], [30, 31], [32, 33], [34, 35]
    for i in range(2):
        for d in range(4):
            P.I('v_lshlrev_b32 v%d, 16, v%d\nv_and_b32 v%d, 0xffff0000, v%d' % (F[i] + 2 * d, X[i] + d, F[i] + 2 * d + 1, X[i] + d))
        P.I('v_add_f32 v%d, v%d, v%d' % (S[i], F[i], F[i] + 1))
        for d in range(2, 8):
            P.I('v_add_f32 v%d, v%d, v%d' % (S[i], S[i], F[i] + d))
    wave_sum(P, S, T)
    for i in range(2):
        P.I('v_mul_f32 v%d, 0x3b000000, v%d' % (S[i], S[i]))
    for d in range(8):
        for i in range(2):
            P.I('v_sub_f32 v%d, v%d, v%d' % (T[i], F[i] + d, S[i]))
        for i in range(2):
            P.I(('v_mul_f32 v%d, v%d, v%d' if d == 0 else 'v_fmac_f32 v%d, v%d, v%d') % (Q[i], T[i], T[i]))
    wave_sum(P, Q, T)
    steps = ['v_mul_f32 v%(q)d, 0x3b000000, v%(q)d', 'v_cvt_pk_bf16_f32 v%(q)d, v%(q)d, v%(q)d', 'v_lshlrev_b32 v%(q)d, 16, v%(q)d',
             'v_add_f32 v%%(q)d, %s, v%%(q)d' % fbits(1e-5), 'v_cvt_pk_bf16_f32 v%(q)d, v%(q)d, v%(q)d', 'v_lshlrev_b32 v%(q)d, 16, v%(q)d',
             'v_sqrt_f32 v%(q)d, v%(q)d', 'v_cvt_pk_bf16_f32 v%(s)d, v%(s)d, v%(s)d', 'v_cvt_pk_bf16_f32 v%(q)d, v%(q)d, v%(q)d',
             'v_lshlrev_b32 v%(s)d, 16, v%(s)d', 'v_lshlrev_b32 v%(q)d, 16, v%(q)d']
    for st in steps:
        for i in range(2):
            P.I(st % dict(q=Q[i], s=S[i]))
    P.I('s_lshl_b32 s60, s2, 7\ns_lshl_b32 s61, s56, 3\ns_add_u32 s60, s60, s61\nv_mov_b32 v25, 0\ns_mov_b64 exec, 1')
    P.I('buffer_store_dwordx2 v[30:31], v25, s[28:31], s60 offen sc0 sc1')
    P.I('buffer_store_dwordx2 v[32:33], v25, s[28:31], s60 offen offset:32 sc0 sc1')
    P.I('s_mov_b64 exec, -1')


def arrive(P):
    P.I('s_and_b32 s60, s2, 63\ns_lshl_b32 s60, s60, 2\ns_cmp_eq_u32 s56, 0\ns_cselect_b32 s60, s60, 0x%x' % HUGE)
    P.I('v_mov_b32 v24, 1\nv_mov_b32 v25, 0\ns_mov_b64 exec, 1')
    P.I('buffer_atomic_add v24, v25, s[32:35], s60 offen sc1')
    P.I('s_mov_b64 exec, -1')


def counter_load(P):
    P.I('v_lshlrev_b32 v26, 2, v1')
    P.I('buffer_load_dword v27, v26, s[32:35], 0 offen sc0 sc1')


def counter_wait(P, tag):
    P.I('v_cmp_ne_u32 vcc, 4, v27\ns_mov_b32 s61, 0')
    P.I('s_cbranch_vccz L_cok%s' % tag)
    P.cond_begin()
    P.I('L_cspin%s:' % tag)
    P.I('s_sleep 4\nbuffer_load_dword v27, v26, s[32:35], 0 offen sc0 sc1\ns_add_u32 s61, s61, 1\ns_waitcnt vmcnt(0)')
    P.I('v_cmp_ne_u32 vcc, 4, v27\ns_cmp_ge_u32 s61, %d\ns_cbranch_scc1 L_cok%s\ns_nop 2\ns_cbranch_vccnz L_cspin%s' % (SPIN_MAX, tag, tag))
    P.cond_end()
    P.I('L_cok%s:' % tag)


def stats_load(P):
    P.I('''s_mul_i32 s60, s57, 24
s_sub_u32 s60, s60, 2
v_lshrrev_b32 v26, 1, v1
v_add_u32 v26, s60, v26
v_max_i32 v26, 0, v26
v_min_u32 v26, 0xff, v26
v_lshlrev_b32 v26, 7, v26
v_and_b32 v27, 1, v1
v_lshl_add_u32 v26, v27, 4, v26
s_and_b32 s61, s56, 1
s_lshl_b32 s61, s61, 5
buffer_load_dwordx4 v[28:31], v26, s[28:31], s61 offen sc0 sc1''')


def stats_to_lds(P):
    P.I('s_and_b32 s61, s56, 1\ns_cmp_eq_u32 s61, 1\ns_cselect_b64 s[62:63], -1, 0\ns_lshl_b32 s61, s61, 10\ns_add_u32 s61, s61, %d' % L_NM)
    for r in range(4):
        P.I('v_rcp_f32 v%d, v%d' % (32 + r, 28 + r))
    for r in range(4):
        P.I('v_xor_b32 v%d, 0x80000000, v%d' % (28 + r, 28 + r))
    for r in range(4):
        P.I('v_cndmask_b32 v%d, v%d, v%d, s[62:63]' % (28 + r, 28 + r, 32 + r))
    P.I('v_lshl_add_u32 v26, v1, 4, s61\nds_write_b128 v26, v[28:31]\ns_waitcnt lgkmcnt(0)')


def w2_l2_prefetch(P):
    P.I('''s_lshr_b32 s60, s2, 3
s_mul_i32 s60, s60, 59
v_add_u32 v26, s60, v1
v_cmp_gt_u32 vcc, 59, v1
v_mov_b32 v27, 0x%x
v_subrev_u32 v28, 512, v26
v_lshlrev_b32 v26, 10, v26
v_lshlrev_b32 v28, 10, v28
v_cndmask_b32 v26, v27, v26, vcc
v_cndmask_b32 v28, v27, v28, vcc
v_min_u32 v28, v27, v28
s_lshl_b32 s61, s56, 8''' % HUGE)
    srd(P, 8, 40, 0x80000)
    srd(P, 12, 48, 0x158000)
    for i in range(2):
        P.I('buffer_load_dword v9, v26, s[8:11], s61 offen offset:%d' % (128 * i))
        P.I('buffer_load_dword v9, v28, s[12:15], s61 offen offset:%d' % (128 * i))


def flags_poll(P):
    P.I('''s_mul_i32 s60, s%d, 21846
s_lshr_b32 s60, s60, 16
s_mul_i32 s60, s60, %d
s_add_u32 s60, s60, 0x%x
v_min_u32 v26, 22, v1
v_lshlrev_b32 v26, 7, v26
s_mov_b32 s61, 0''' % (p2.S_TB2, 23 * 128, FLAGS_OFF - STATS_OFF))
    P.I('L_fspin:')
    P.I('buffer_load_dwordx4 v[28:31], v26, s[28:31], s60 offen sc0 sc1\ns_add_u32 s61, s61, 1\ns_waitcnt vmcnt(0)')
    P.I('v_and_b32 v28, v28, v29\nv_and_b32 v30, v30, v31\nv_and_b32 v28, v28, v30\nv_cmp_ne_u32 vcc, 1, v28')
    P.I('s_cmp_ge_u32 s61, %d\ns_cbranch_scc1 L_fok\ns_nop 2\ns_cbranch_vccz L_fok\ns_sleep 1\ns_branch L_fspin' % SPIN_MAX)
    P.I('L_fok:')


def cs_ffn(a_):
    return 20 + 4 * a_ if a_ < 4 else 248 + 4 * (a_ - 4)


def ones_setup(P):
    for r in range(4):
        P.I('v_mov_b32 v%d, 0x3f803f80' % (V_ONES + r))


def extra_ffn(kk, a_, A):
    return [mfma(cs_ffn(a_), A, V_ONES, kk == 0)]


def extra_att(kk, t, wb):
    if t == 1:
        return [mfma(24, wb + 4, V_ONES, kk == 0)]
    if t == 2:
        return [mfma(28, V_ONES, wb + 8, kk == 0)]
    if t == 3:
        return [mfma(20, wb, V_ONES, kk == 0)]
    return []


def bc(pair_reg, idx):
    return v(pair_reg, 2), idx


def pk(op, d, a_, b_, c_=None, bsel=(None, None, None)):
    srcs = [a_, b_] + ([c_] if c_ is not None else [])
    lo = [0 if bsel[i] is None else bsel[i] for i in range(len(srcs))]
    hi = [1 if bsel[i] is None else bsel[i] for i in range(len(srcs))]
    t = '%s %s, %s' % (op, v(d, 2), ', '.join(x if isinstance(x, str) else v(x, 2) for x in srcs))
    if any(lo):
        t += ' op_sel:[%s]' % ','.join(map(str, lo))
    if not all(hi):
        t += ' op_sel_hi:[%s]' % ','.join(map(str, hi))
    return t


def ffn_epilogue2(P, aux, fill=None):
    PA = lambda b: 40 + 4 * b
    PB = lambda b: 42 + 4 * b
    P.I('v_and_b32 v12, 15, v1\nv_lshlrev_b32 v12, 2, v12\ns_lshr_b32 s60, s56, 1\ns_mul_i32 s60, s60, 384\ns_add_u32 s60, s60, %d\nv_add_u32 v12, s60, v12' % (L_NM + 64))
    for b in range(6):
        P.I('ds_read_b32 v%d, v12 offset:%d\nds_read_b32 v%d, v12 offset:%d' % (PA(b), 64 * b, PB(b), 1024 + 64 * b))
    store_addr_setup(P)
    P.I('''s_lshr_b32 s60, s56, 1
s_mul_i32 s60, s60, 6
s_mul_i32 s61, s57, 12
s_add_u32 s60, s60, s61
s_mul_i32 s78, s60, %d
s_and_b32 s60, s56, 1
s_mul_i32 s60, s60, 3
s_mul_i32 s61, s58, 6
s_add_u32 s60, s60, s61
s_sub_u32 s76, s60, 16''' % TP)
    for b in range(6):
        P.I('v_mul_f32 v%d, v%d, v%d' % (PA(b) + 1, PB(b), PB(b)))
    for b in range(6):
        P.I('v_mul_f32 v%d, v%d, v%d' % (PB(b) + 1, PA(b) + 1, PB(b)))
    for b in range(6):
        P.I('v_rcp_f32 v%d, v%d' % (PA(b) + 1, PA(b) + 1))
    for b in range(6):
        P.I('v_mul_f32 v%d, %s, v%d\nv_mul_f32 v%d, %s, v%d' % (PB(b), fbits(C0), PB(b), PB(b) + 1, fbits(C1), PB(b) + 1))
    T = 64
    blk = 0
    for uu in range(3):
        P.I('s_add_u32 s60, s76, %d\ns_cmp_lt_u32 s60, 118\ns_cselect_b32 s61, s78, 0x%x\ns_lshl_b32 s60, s60, 9\ns_add_u32 s77, s61, s60' % (uu, HUGE))
        for bp in range(3):
            tb = [2 * bp + (q >> 1) for q in range(4)]
            G = [ffn_acc(2 * uu, tb[q]) + 2 * (q & 1) for q in range(4)]
            U = [ffn_acc(2 * uu + 1, tb[q]) + 2 * (q & 1) for q in range(4)]
            cG = [cs_ffn(2 * uu) + 2 * (q & 1) for q in range(4)]
            cU = [cs_ffn(2 * uu + 1) + 2 * (q & 1) for q in range(4)]
            t = [T + 8 * (blk % 2) + 2 * q for q in range(4)]
            o = T + 16 + 4 * (blk % 4)
            R = range(4)
            L = []
            L += [pk('v_pk_fma_f32', G[q], cG[q], PA(tb[q]), G[q], (None, 0, None)) for q in R]
            L += [pk('v_pk_fma_f32', U[q], cU[q], PA(tb[q]), U[q], (None, 0, None)) for q in R]
            L += [pk('v_pk_mul_f32', t[q], G[q], G[q]) for q in R]
            L += [pk('v_pk_fma_f32', t[q], t[q], PB(tb[q]), PB(tb[q]), (None, 1, 0)) for q in R]
            L += [pk('v_pk_mul_f32', t[q], t[q], G[q]) for q in R]
            for q in R:
                L += ['v_exp_f32 v%d, v%d' % (t[q], t[q]), 'v_exp_f32 v%d, v%d' % (t[q] + 1, t[q] + 1)]
            L += [pk('v_pk_fma_f32', t[q], t[q], PA(tb[q]), PA(tb[q]), (None, 1, 1)) for q in R]
            for q in R:
                L += ['v_rcp_f32 v%d, v%d' % (t[q], t[q]), 'v_rcp_f32 v%d, v%d' % (t[q] + 1, t[q] + 1)]
            L += [pk('v_pk_mul_f32', t[q], t[q], G[q]) for q in R]
            L += [pk('v_pk_mul_f32', t[q], t[q], U[q]) for q in R]
            L += ['v_cvt_pk_bf16_f32 v%d, v%d, v%d' % (o + q, t[q], t[q] + 1) for q in R]
            P.I('\n'.join(L))
            P.I('s_add_u32 s60, s77, %d' % (2 * bp * TP))
            P.I('v_permlane16_swap_b32 v%d, v%d\nv_permlane16_swap_b32 v%d, v%d' % (o, o + 2, o + 1, o + 3))
            P.I('buffer_store_dwordx4 %s, v%d, s[16:19], s60 offen %s' % (v(o, 4), V_ST, aux))
            blk += 1


V_VP = 66
V_MP0, V_MP1, V_MO0, V_MO1 = 96, 97, 98, 99


def att_epilogue2(P, aux):
    ROWM, ROWR, LANE = [32, 92], [36, 100], [64, 2]
    P.I('v_and_b32 v4, 15, v1\nv_lshrrev_b32 v5, 4, v1\nv_lshlrev_b32 v6, 2, v4\nv_add_u32 v6, %d, v6\nv_lshlrev_b32 v7, 4, v5\nv_add_u32 v7, %d, v7' % (L_NM, L_NM))

    def rd(t):
        b = t & 1
        return ['ds_read_b32 v%d, v6 offset:%d' % (LANE[b], 64 * t), 'ds_read_b32 v%d, v6 offset:%d' % (LANE[b] + 1, 1024 + 64 * t),
                'ds_read_b128 %s, v7 offset:%d' % (v(ROWM[b], 4), 64 * t), 'ds_read_b128 %s, v7 offset:%d' % (v(ROWR[b], 4), 1024 + 64 * t)]
    P.I('\n'.join(rd(0)))
    store_addr_setup(P)
    P.I('''v_and_b32 v8, 1, v1
v_lshl_add_u32 v5, v5, 2, v8
v_add_u32 v9, 2, v5
v_cmp_eq_u32 s[64:65], 1, v8
v_cmp_le_u32 s[66:67], v5, v4
v_cmp_le_u32 s[68:69], v9, v4
v_mov_b32 v8, 0xffff
v_mov_b32 v9, 0xffff0000
v_cndmask_b32 v8, v8, v9, s[64:65]
v_cndmask_b32 v98, 0, v8, s[66:67]
v_cndmask_b32 v99, 0, v8, s[68:69]
v_xor_b32 v96, v98, v8
v_xor_b32 v97, v99, v8
v_mov_b32 v12, %s
v_mov_b32 v13, %s
v_mov_b32 v14, %s
s_cmp_eq_u32 s57, 0
s_cselect_b64 s[70:71], -1, 0
s_mul_i32 s60, s57, %d
s_lshl_b32 s61, s58, 2
s_add_u32 s61, s61, s56
s_lshl_b32 s61, s61, 9
s_add_u32 s77, s60, s61''' % (fbits(0.25 * LOG2E), fbits(0.25 * LOG2E), fbits(-4e9), 12 * TP))
    for t in range(13):
        b = t & 1
        k, vv = att_acck(t), att_accv(t)
        L = []
        if t < 12:
            L += rd(t + 1)
        mats = [(k, 24)] + ([(att_accq(t), 20)] if t >= 1 else [])
        for x, cs in mats:
            L += [pk('v_pk_fma_f32', x + 2 * h, cs + 2 * h, LANE[b], x + 2 * h, (None, 0, None)) for h in range(2)]
        L += [pk('v_pk_fma_f32', vv + 2 * h, ROWM[b] + 2 * h, 28, vv + 2 * h, (None, 0, None)) for h in range(2)]
        for x, cs in mats:
            L += [pk('v_pk_mul_f32', x + 2 * h, x + 2 * h, LANE[b], None, (None, 1)) for h in range(2)]
        L += [pk('v_pk_mul_f32', vv + 2 * h, vv + 2 * h, ROWR[b] + 2 * h) for h in range(2)]
        for x, cs in mats:
            L += ['v_cvt_pk_bf16_f32 v%d, v%d, v%d' % (x, x, x + 1), 'v_cvt_pk_bf16_f32 v%d, v%d, v%d' % (x + 1, x + 2, x + 3)]
        L += ['v_cvt_pk_bf16_f32 v%d, v%d, v%d' % (V_VP + 2 * t, vv, vv + 1), 'v_cvt_pk_bf16_f32 v%d, v%d, v%d' % (V_VP + 2 * t + 1, vv + 2, vv + 3)]
        P.I('\n'.join(L))
    pool = [att_accv(t) for t in range(13)] + [40, 44, 48]
    G = 4
    SP = lambda t: pool[8 * (((t - 1) // G) % 2) + 2 * ((t - 1) % G)]
    SO = lambda t: pool[8 * (((t - 1) // G) % 2) + 2 * ((t - 1) % G) + 1]

    def scores(t0):
        L = []
        for t in range(t0, t0 + G):
            q = att_accq(t)
            L.append('v_mfma_f32_16x16x16bf16_1k %s, %s, %s, 0' % (v(SP(t), 4), v(att_acck(t - 1), 2), v(q, 2)))
            L.append('v_mfma_f32_16x16x16bf16_1k %s, %s, %s, 0' % (v(SO(t), 4), v(att_acck(t), 2), v(q, 2)))
        return L
    P.I('\n'.join(scores(1) + scores(1 + G)))
    for t0 in range(1, 13, G):
        ts_ = list(range(t0, t0 + G))
        S = {t: 20 + 4 * (t - t0) for t in ts_}
        L = []
        for t in ts_:
            sp, so = SP(t), SO(t)
            L += ['v_cndmask_b32 v%d, v%d, v%d, s[64:65]' % (sp, sp, sp + 1),
                  'v_cndmask_b32 v%d, v%d, v%d, s[64:65]' % (sp + 2, sp + 2, sp + 3),
                  'v_cndmask_b32 v%d, v%d, v%d, s[64:65]' % (so, so, so + 1),
                  'v_cndmask_b32 v%d, v%d, v%d, s[64:65]' % (so + 2, so + 2, so + 3)]
            if t == 1:
                L += ['v_cndmask_b32 v%d, v%d, v14, s[70:71]' % (sp, sp),
                      'v_cndmask_b32 v%d, v%d, v14, s[70:71]' % (sp + 2, sp + 2)]
        for t in ts_:
            sp, so = SP(t), SO(t)
            L += ['v_cndmask_b32 v%d, v%d, v%d, s[66:67]' % (S[t], sp, so),
                  'v_cndmask_b32 v%d, v%d, v%d, s[68:69]' % (S[t] + 1, sp + 2, so + 2)]
        L += ['v_max_f32 v%d, v%d, v%d' % (S[t] + 2, S[t], S[t] + 1) for t in ts_]
        for sw in ('v_permlane16_swap_b32', 'v_permlane32_swap_b32'):
            L += ['v_mov_b32 v%d, v%d' % (S[t] + 3, S[t] + 2) for t in ts_]
            L += ['%s v%d, v%d' % (sw, S[t] + 2, S[t] + 3) for t in ts_]
            L += ['v_max_f32 v%d, v%d, v%d' % (S[t] + 2, S[t] + 2, S[t] + 3) for t in ts_]
        L += ['v_pk_add_f32 %s, %s, %s op_sel_hi:[1,0] neg_lo:[0,1] neg_hi:[0,1]' % (v(S[t], 2), v(S[t], 2), v(S[t] + 2, 2)) for t in ts_]
        L += ['v_pk_mul_f32 %s, %s, v[12:13]' % (v(S[t], 2), v(S[t], 2)) for t in ts_]
        for t in ts_:
            L += ['v_exp_f32 v%d, v%d' % (S[t], S[t]), 'v_exp_f32 v%d, v%d' % (S[t] + 1, S[t] + 1)]
        for t in ts_:
            L += ['v_cvt_pk_bf16_f32 v%d, v%d, v%d' % (S[t], S[t], S[t]), 'v_cvt_pk_bf16_f32 v%d, v%d, v%d' % (S[t] + 1, S[t] + 1, S[t] + 1)]
        for t in ts_:
            pb = att_accq(t)
            L += ['v_and_b32 v%d, v%d, v%d' % (pb, S[t], V_MP0), 'v_and_b32 v%d, v%d, v%d' % (pb + 1, S[t] + 1, V_MP1),
                  'v_and_b32 v%d, v%d, v%d' % (pb + 2, S[t], V_MO0), 'v_and_b32 v%d, v%d, v%d' % (pb + 3, S[t] + 1, V_MO1)]
        for t in ts_:
            pb = att_accq(t)
            L += ['v_mfma_f32_16x16x32_bf16 %s, %s, %s, 0' % (v(SO(t), 4), v(V_ONES, 4), v(pb, 4)),
                  'v_mfma_f32_16x16x32_bf16 %s, %s, %s, 0' % (v(SP(t), 4), v(V_VP + 2 * (t - 1), 4), v(pb, 4))]
        L += ['v_rcp_f32 v%d, v%d' % (SO(t), SO(t)) for t in ts_]
        for t in ts_:
            L += ['v_pk_mul_f32 %s, %s, %s op_sel_hi:[1,0]' % (v(SP(t), 2), v(SP(t), 2), v(SO(t), 2)),
                  'v_pk_mul_f32 %s, %s, %s op_sel_hi:[1,0]' % (v(SP(t) + 2, 2), v(SP(t) + 2, 2), v(SO(t), 2))]
        for t in ts_:
            o = att_accq(t - ((t - 1) & 1)) + 2 * ((t - 1) & 1)
            L += ['v_cvt_pk_bf16_f32 v%d, v%d, v%d' % (o, SP(t), SP(t) + 1), 'v_cvt_pk_bf16_f32 v%d, v%d, v%d' % (o + 1, SP(t) + 2, SP(t) + 3)]
        if t0 == 1:
            L += scores(1 + 2 * G)
        for t in ts_[::2]:
            o = att_accq(t)
            L += ['s_add_u32 s60, s77, %d' % ((t - 1) * TP),
                  'v_permlane16_swap_b32 v%d, v%d' % (o, o + 2), 'v_permlane16_swap_b32 v%d, v%d' % (o + 1, o + 3),
                  'buffer_store_dwordx4 %s, v%d, s[16:19], s60 offen %s' % (v(o, 4), V_ST, aux)]
        P.I('\n'.join(L))
```

```python
from p1 import *
import duty

S_TAB = 59
S_PXO, S_PWO = 77, 78
SRD_PF = 20
V_PX, V_PW = 7, 8
V_DUM = 9
HUGE = 0x7f000000


def table_load(P):
    P.I('s_getpc_b64 s[84:85]')
    P.I('L_pfpc:')
    P.I('s_lshl_b32 s60, s2, 2\ns_add_u32 s60, s60, L_table-L_pfpc\ns_load_dword s%d, s[84:85], s60' % S_TAB)


def table_decode(P):
    P.I('s_and_b32 s57, s%d, 15\ns_bfe_u32 s58, s%d, 0x50008' % (S_TAB, S_TAB))


def table_text():
    t = duty.table()
    return 'L_table:\n' + ''.join('.long %s\n' % ', '.join('0x%08x' % x for x in t[i:i + 8]) for i in range(0, 256, 8))


def wave_split(P):
    P.I('v_lshrrev_b32 v11, 6, v0\nv_and_b32 v1, 63, v0\nv_readfirstlane_b32 s79, v11\ns_and_b32 s56, s79, 3')


def code_prefetch2(P, dst):
    P.I('s_lshr_b32 s60, s2, 3\ns_lshl_b32 s60, s60, 3\ns_add_u32 s60, s60, s79\ns_lshl_b32 s60, s60, 8\nv_lshl_add_u32 v11, v1, 2, s60')
    P.I('v_min_u32 v11, L_code_end-L_pfpc-4, v11')
    P.I('global_load_dword v%d, v11, s[84:85]' % dst)


def pf_setup(P, role):
    P.I('''s_bitcmp1_b32 s%d, 4
s_cselect_b32 s60, 52, 48
s_cselect_b32 s61, 16, 0
s_mul_i32 s62, s56, s60
s_mul_i32 s63, s57, 192
s_add_u32 s62, s62, s63
s_sub_u32 s62, s62, s61
v_add_u32 v11, s62, v1
v_max_i32 v11, 0, v11
v_lshlrev_b32 v11, 10, v11
v_cmp_gt_u32 vcc, s60, v1
v_mov_b32 v12, 0x%x
v_cndmask_b32 v%d, v12, v11, vcc''' % (S_TAB, HUGE, V_PX))
    if role == 'ffn':
        P.I('s_cmp_lt_u32 s56, 2\ns_cselect_b32 s20, s44, s46\ns_cselect_b32 s21, s45, s47\ns_mov_b32 s22, 0x158000\ns_mov_b32 s23, 0x20000')
        P.I('''s_and_b32 s60, s56, 1
s_mul_i32 s60, s60, %d
s_sub_u32 s61, s58, 8
s_mul_i32 s61, s61, 192
s_add_u32 s60, s60, s61
s_mov_b32 s61, %d
v_lshrrev_b32 v11, 1, v1
v_mul_u32_u24 v11, s61, v11
v_and_b32 v12, 1, v1
v_lshl_add_u32 v11, v12, 7, v11
v_add_u32 v%d, s60, v11''' % (32 * PITCH_F, PITCH_F, V_PW))
    else:
        P.I('s_mov_b32 s20, s38\ns_mov_b32 s21, s39\ns_mov_b32 s22, 0x180000\ns_mov_b32 s23, 0x20000')
        P.I('''s_mul_i32 s60, s56, %d
s_lshl_b32 s61, s58, 7
s_add_u32 s60, s60, s61
s_mov_b32 s61, %d
v_and_b32 v11, 15, v1
v_mul_u32_u24 v11, s61, v11
v_lshrrev_b32 v12, 4, v1
v_lshl_add_u32 v11, v12, 10, v11
v_add_u32 v11, s60, v11
v_cmp_gt_u32 vcc, 48, v1
v_mov_b32 v12, 0x%x
v_cndmask_b32 v%d, v12, v11, vcc''' % (16 * PITCH_Q, PITCH_Q, HUGE, V_PW))


def pf_duty(role, k, aux=''):
    pitch = PITCH_F if role == 'ffn' else PITCH_Q
    return ['s_bitcmp1_b32 s%d, %d' % (S_TAB, 16 + k),
            's_mov_b32 s60, 0x%x' % HUGE,
            's_cselect_b32 s60, %d, s60' % (128 * k),
            'buffer_load_dword v%d, v%d, s[4:7], s60 offen %s' % (V_DUM, V_PX, aux),
            's_bitcmp1_b32 s%d, %d' % (S_TAB, 24 + k),
            's_mov_b32 s60, 0x%x' % HUGE,
            's_cselect_b32 s60, %d, s60' % (64 * pitch * k),
            'buffer_load_dword v%d, v%d, s[20:23], s60 offen %s' % (V_DUM, V_PW, aux)]


AUX = {'x': '', 'w': ''}


def dma_list(role, c):
    g = x_dma(role, 'raw', c % NST)
    w = w_dma(role, c % NST)
    g = [[x.replace(' lds', ' %s lds' % AUX['x']) for x in q] for q in g]
    w = [[x.replace(' lds', ' %s lds' % AUX['w']) for x in q] for q in w]
    return w + g, chunk_advance(role, 'raw', AUX.get('rot'))


def loader_main(P, role, pf=True, split=4, ts=None, early=None, after_init=None, hook=None, pf_lead=3, prebar=None, post=None):
    n = n_dma(role)

    def issue(c, lo, hi):
        g, adv = dma_list(role, c)
        seq = []
        m0 = None
        for i, grp in enumerate(g):
            for x in grp:
                if x.startswith('s_add_u32 m0'):
                    m0 = x
            if i == lo and lo > 0 and not grp[0].startswith('s_add_u32 m0'):
                seq.append(m0)
            if lo <= i < hi:
                seq += [x + ' ;@def C%d' % c if 'buffer_load' in x else x for x in grp]
        if hi == n and c < 7:
            seq += adv
        P.I('\n'.join(seq))
    if early:
        early(P)
    if pf:
        P.I('\n'.join(pf_duty(role, 0) + pf_duty(role, 1)))
    issue(0, 0, n)
    if after_init:
        after_init(P)
    issue(1, 0, split)
    if ts:
        ts(P, 'l_issued')
    for c in range(8):
        P.I('s_nop 0 ;@use C%d' % c)
        if prebar:
            prebar(P, c)
        P.I('s_barrier')
        if ts and c == 0:
            ts(P, 'l_c0')
        if hook:
            hook(P, c)
        if c + 1 < 8:
            issue(c + 1, split, n)
        if c + 2 < 8:
            issue(c + 2, 0, split)
        if post:
            post(P, c)
        k = c + pf_lead
        if pf and 2 <= k < 8 and c >= 0:
            P.I('\n'.join(pf_duty(role, k)))
        if pf and c == 0:
            for k2 in range(2, pf_lead):
                P.I('\n'.join(pf_duty(role, k2)))


def ffn_compute(P, ts=None, extra=None, bar8=False):
    P.I('s_barrier')
    if ts:
        ts(P, 'chunk0')
    for b in range(6):
        P.I(ffn_B_read(b, 0, 0))
    P.I('\n'.join(ffn_A_read(0, 0, 0) + ffn_A_read(1, 0, 1)))
    for c in range(8):
        mf, fill = [], {}
        for ks in range(2):
            kk = 2 * c + ks
            for a_ in range(6):
                n = 6 * kk + a_
                base = len(mf)
                for b in range(6):
                    mf.append(mfma(ffn_acc(a_, b), V_FR + 48 + 4 * (n % 3), V_FR + 24 * (kk % 2) + 4 * b, kk == 0))
                if extra:
                    mf += extra(kk, a_, V_FR + 48 + 4 * (n % 3))
                last_chunk = c == 7
                if ks == 1 and a_ == 4 and (bar8 or not last_chunk):
                    fill.setdefault(base - 1, []).extend(['s_waitcnt lgkmcnt(0)', 's_barrier'])
                n2 = n + 2
                if n2 < 96:
                    a2, ks2 = n2 % 6, (n2 // 6) % 2
                    r = ffn_A_read(a2, ks2, n2 % 3)
                    fill.setdefault(base, []).append(r[0])
                    fill.setdefault(base + 1, []).append(r[1])
                    if ks == 1 and a_ == 3 and not last_chunk:
                        sw = stage_switch('ffn', c)
                        fill.setdefault(base + 2, []).extend(sw[:2])
                        fill.setdefault(base + 3, []).extend(sw[2:])
                if kk < 15:
                    if ks == 0 and a_ < 3:
                        for t in range(2):
                            fill.setdefault(base + 2 + t, []).append(ffn_B_read(2 * a_ + t, 1, (kk + 1) % 2))
                    if ks == 1 and a_ >= 4:
                        for t in range(3):
                            fill.setdefault(base + 2 + t, []).append(ffn_B_read(3 * (a_ - 4) + t, 0, (kk + 1) % 2))
        P.I('\n'.join(interleave(mf, fill)))


def att_compute(P, ts=None, extra=None, bar8=False):
    NXB, D = 5, 3
    P.I('s_barrier')
    if ts:
        ts(P, 'chunk0')
    P.I('\n'.join(att_W_read(1, 0, 0) + att_W_read(2, 0, 0)))
    for t in range(D):
        P.I(att_X_read(t, 0, t % NXB))
    P.I('\n'.join(att_W_read(0, 0, 0)))
    for c in range(8):
        mf, fill = [], {}
        for ks in range(2):
            kk = 2 * c + ks
            wb = V_FR + 12 * (kk % 2)
            for t in range(13):
                n = 13 * kk + t
                base = len(mf)
                xb = V_FR + 24 + 4 * (n % NXB)
                mf.append(mfma(att_acck(t), wb + 4, xb, kk == 0))
                mf.append(mfma(att_accv(t), wb + 8, xb, kk == 0, swap=True))
                if t >= 1:
                    mf.append(mfma(att_accq(t), wb, xb, kk == 0))
                if extra:
                    mf += extra(kk, t, wb)
                last_chunk = c == 7
                bar_t = 13 - D
                if ks == 1 and t == bar_t and (bar8 or not last_chunk):
                    fill.setdefault(base - 1, []).extend(['s_waitcnt lgkmcnt(0)', 's_barrier'])
                if ks == 1 and t == bar_t - 1 and not last_chunk:
                    sw = stage_switch('att', c)
                    fill.setdefault(base + 1, []).extend(sw[:2])
                    fill.setdefault(base + 2, []).extend(sw[2:])
                n2 = n + D
                if n2 < 13 * 16:
                    t2, ks2 = n2 % 13, (n2 // 13) % 2
                    fill.setdefault(base, []).append(att_X_read(t2, ks2, n2 % NXB))
                if kk < 15:
                    order = [1, 2, 0]
                    if ks == 0 and 1 <= t <= 6:
                        m = order[(t - 1) // 2]
                        fill.setdefault(base + 1, []).append(att_W_read(m, 1, (kk + 1) % 2)[(t - 1) % 2])
                    if ks == 1 and t >= bar_t:
                        m = order[t - bar_t]
                        r = att_W_read(m, 0, (kk + 1) % 2)
                        fill.setdefault(base + 1, []).append(r[0])
                        fill.setdefault(base + 2, []).append(r[1])
        P.I('\n'.join(interleave(mf, fill)))
```

```python
import sys, re
from fz import *
import p2, duty
from p2 import p2_decode, p2_w_setup, p2_b_setup, p2_x_setup, p2_main, p2_tail, p2_w_dma

NAME = 'parallel_sum__sliding_local_dilated__geglu_ffn__prompt'
HEADER = open('cdna_kernels/%s.s.ref' % NAME).read().split('; Override launch')[0]


def kd(name, vgpr, accum):
    return '''.section .rodata,"a"
.p2align 6
.amdhsa_kernel %s
  .amdhsa_next_free_vgpr %d
  .amdhsa_next_free_sgpr 102
  .amdhsa_accum_offset %d
  .amdhsa_group_segment_fixed_size 0
  .amdhsa_kernarg_size 80
  .amdhsa_user_sgpr_count 2
  .amdhsa_user_sgpr_kernarg_segment_ptr 1
  .amdhsa_system_sgpr_workgroup_id_x 1
  .amdhsa_float_denorm_mode_32 3
.end_amdhsa_kernel
.text
''' % (name, vgpr, accum)


def head(name):
    return '.globl %s\n.p2align 8\n.type %s,@function\n' % (name, name)


class TS:
    NAMES = ['setup', 'c0', 'main', 'epi', 'flag', 'p2go', 'p2main', 'issued', 'w2iss', 'polled']

    def __init__(self, on):
        self.on = on

    def __call__(self, P, name):
        if self.on and name in self.NAMES:
            P.I('s_memtime s[80:81]\ns_waitcnt lgkmcnt(0)\ns_mov_b32 s%d, s80' % (86 + self.NAMES.index(name)))

    def start(self, P):
        if self.on:
            P.I('s_memtime s[80:81]\ns_memrealtime s[82:83]')
            for i in range(len(self.NAMES)):
                P.I('s_mov_b32 s%d, 0' % (86 + i))

    def save_start(self, P):
        if self.on:
            P.I('s_mov_b32 s100, s80\ns_mov_b32 s101, s82')

    def dump(self, P):
        if not self.on:
            return
        P.I('s_waitcnt vmcnt(0)\ns_memtime s[80:81]\ns_memrealtime s[82:83]\ns_waitcnt lgkmcnt(0)\ns_mov_b32 s98, s80\ns_mov_b32 s99, s82')
        srd_off(P, 32, 54, 0x4000000, 0x40000)
        P.I('s_lshl_b32 s60, s2, 10\ns_lshl_b32 s61, s79, 7\ns_add_u32 s60, s60, s61')
        for i in range(16):
            P.I('v_mov_b32 v12, s%d\nv_mov_b32 v13, %d\nbuffer_store_dword v12, v13, s[32:35], s60 offen' % (86 + i, 4 * i))


OPT = dict(split=8, w2pf=True, st_aux='sc0 sc1', ld_aux='sc1', rot=None)


def build(timing=False, **kw):
    o = dict(OPT)
    o.update(kw)
    AUX['rot'] = o['rot']
    duty.ROT[0] = o['rot'] or [0] * 8
    kn = NAME + '_kernel'
    P = Prog()
    ts = TS(timing)
    P.I(kn + ':')
    ts.start(P)
    P.I('s_load_dwordx16 s[36:51], s[0:1], 0\ns_load_dwordx4 s[52:55], s[0:1], 64')
    P.I('s_cmp_ge_u32 s2, 256\ns_cbranch_scc1 L_end')
    table_load(P)
    wave_split(P)
    code_prefetch2(P, 100)
    P.I('s_waitcnt lgkmcnt(0)')
    ts.save_start(P)
    table_decode(P)
    srd(P, SRD_X, 36, 2048 * 1024)
    srd_off(P, SRD_AUX, 54, STATS_OFF, 0x200000)
    P.I('s_cmp_ge_u32 s79, 4\ns_cbranch_scc1 L_loader')
    srd_off(P, 16, 54, ACT_OFF, ACT_BYTES)
    P.I('s_bitcmp1_b32 s59, 7\ns_cbranch_scc1 L_cidle')
    P.I('s_cmp_lt_u32 s58, 8\ns_cbranch_scc1 L_catt')
    for role in ('ffn', 'att'):
        if role == 'att':
            P.new_path()
            P.I('L_catt:')
        frag_addr_setup(P, role)
        ones_setup(P)
        P.I('s_waitcnt vmcnt(0)')
        (ffn_compute if role == 'ffn' else att_compute)(P, lambda P, n: ts(P, 'c0'), extra_ffn if role == 'ffn' else extra_att, True)
        ts(P, 'main')
        (ffn_epilogue2 if role == 'ffn' else att_epilogue2)(P, o['st_aux'])
        ts(P, 'epi')
        if role == 'ffn':
            P.I('s_branch L_cflag')
    P.I('L_cflag:')
    flag_offset(P, 62)
    P.I('s_waitcnt vmcnt(0)')
    flag_store(P, 1)
    ts(P, 'flag')
    P.I('L_cp2:')
    p2_decode(P)
    srd(P, SRD_OUT, 50, 2048 * 1024)
    p2_w_setup(P)
    p2_b_setup(P)
    p2_x_setup(P)
    P.I('s_barrier')
    ts(P, 'p2go')
    p2_main(P, aux=o['ld_aux'], pre_w=p2.RING)
    ts(P, 'p2main')
    p2_tail(P)
    P.I('s_branch L_fin')
    P.new_path()
    P.I('L_cidle:')
    P.I('s_waitcnt vmcnt(0)\ns_barrier\ns_branch L_cp2')
    P.new_path()
    P.I('L_loader:')
    p0_loads(P)
    srd(P, SRD_DBG, 52, 256)
    P.I('s_bitcmp1_b32 s59, 7\ns_cbranch_scc1 L_lidle')
    flag_offset(P, 62)
    flag_store(P, 0)
    P.I('s_cmp_lt_u32 s58, 8\ns_cbranch_scc1 L_latt')
    for role in ('ffn', 'att'):
        if role == 'att':
            P.new_path()
            P.I('L_latt:')
            P.I('s_nop 0')
            srd(P, SRD_WA, 38, 512 * 3072)
        else:
            srd(P, SRD_WA, 44, 512 * 2752)
            srd(P, SRD_WB, 46, 512 * 2752)
        x_dma_setup(P, role, 'raw')
        w_dma_setup(P, role)
        if o['rot']:
            P.I('s_bfe_u32 s%d, s59, 0x3000d' % S_KC)
        rot_init(P, role, 'raw', o['rot'])
        ts(P, 'setup')
        nd = n_dma(role)

        def after_init(P, role=role, nd=nd):
            ts(P, 'issued')
            if role == 'att':
                P.I('s_waitcnt vmcnt(%d)' % nd)
            p0_stats(P)

        def prebar(P, c, role=role):
            if c == 1:
                P.I('s_nop 0')
            if c == 5:
                counter_wait(P, role)
            if c == 6:
                stats_to_lds(P)

        def hook(P, c):
            if c == 1:
                arrive(P)
            if c == 4:
                counter_load(P)
            if c == 5:
                stats_load(P)

        def post(P, c):
            if c == 6 and o['w2pf']:
                w2_l2_prefetch(P)
        loader_main(P, role, False, o['split'], None, after_init=after_init, hook=hook, prebar=prebar, post=post)
        if role == 'ffn':
            P.I('s_branch L_lw2')
    P.I('L_lw2:')
    p2_decode(P)
    p2_w_setup(P)
    P.I('s_barrier')
    P.I('L_lw2b:')
    for i in range(p2.RING):
        P.I('\n'.join(flat(p2_w_dma(i))))
    ts(P, 'w2iss')
    P.I('s_cmp_lg_u32 s56, 0\ns_cbranch_scc1 L_lwait')
    P.cond_begin()
    flags_poll(P)
    ts(P, 'polled')
    P.cond_end()
    P.I('L_lwait:')
    P.I('s_waitcnt vmcnt(0)\ns_barrier')
    P.I('s_branch L_fin')
    P.new_path()
    P.I('L_lidle:')
    P.I('s_waitcnt vmcnt(0)')
    p0_stats(P)
    P.I('s_waitcnt vmcnt(0)\ns_barrier')
    arrive(P)
    counter_load(P)
    counter_wait(P, 'idle')
    p2_decode(P)
    p2_w_setup(P)
    P.I('s_branch L_lw2b')
    P.new_path()
    P.I('L_fin:')
    ts.dump(P)
    P.I('L_end:\ns_endpgm')
    body = P.finalize() + table_text() + 'L_code_end:\n'
    txt = HEADER + '; @launch grid=(256,1,1) block=(512,1,1) lds=%d\n' % LDS_BYTES
    txt += '.amdgcn_target "amdgcn-amd-amdhsa--gfx950"\n.text\n' + head(kn) + body + kd(kn, 256, 256)
    return txt


if __name__ == '__main__':
    out = sys.argv[1] if len(sys.argv) > 1 else 'f0.s'
    open(out, 'w').write(build())
    print('wrote', out)
```

```python
from collections import Counter


MODE = ['rect']
ROT = [[0] * 8]


def placement_cols():
    X = {k: [(rb, j) for j in (2 * k, 2 * k + 1) for rb in range(11)] for k in range(8)}
    rest = [(rb, j) for j in range(16, 22) for rb in range(11)]
    sizes = [8, 8, 8, 9, 8, 8, 8, 9]
    pos = 0
    for k in range(8):
        X[k] += rest[pos:pos + sizes[k]]
        pos += sizes[k]
    light = [(rb, 22) for rb in range(11)]
    for k in range(8):
        while len(X[k]) < 32 and light:
            X[k].append(light.pop())
    seen = Counter(t for m in X.values() for t in m)
    assert len(seen) == 253 and max(seen.values()) == 1 and max(len(m) for m in X.values()) <= 32
    return X


def placement():
    if MODE[0] == 'cols':
        return placement_cols()
    X = {k: [] for k in range(8)}
    for k in range(4):
        X[k] = [(rb, j) for rb in range(6) for j in range(5 * k, 5 * k + 5)]
    for k in range(3):
        X[4 + k] = [(rb, j) for rb in range(6, 11) for j in range(6 * k, 6 * k + 6)]
    X[7] = [(rb, j) for rb in range(6, 11) for j in range(18, 22)] + [(rb, j) for rb in range(6) for j in (20, 21)]
    for rb in range(6):
        X[(rb + 2) % 4 if rb < 4 else rb - 2].append((rb, 22))
    for rb in range(6, 11):
        X[4 + (rb - 6) % 3].append((rb, 22))
    seen = Counter(t for m in X.values() for t in m)
    assert len(seen) == 253 and max(seen.values()) == 1 and max(len(m) for m in X.values()) <= 32
    return X


PERM = [list(range(8))]


def roles():
    r = [None] * 256
    for k, mem in placement().items():
        for q, t in enumerate(mem):
            r[q * 8 + PERM[0][k]] = t
    return r


def role_of(wg):
    return roles()[wg]


def assign():
    R = roles()
    xm = [0] * 256
    wm = [0] * 256
    for x in range(8):
        mem = [(wg, R[wg][0], R[wg][1]) for wg in range(x, 256, 8) if R[wg]]
        load = {wg: [] for wg, _, _ in mem}
        xs, ws = {}, {}
        for wg, rb, j in mem:
            if j != 22 or not any(r2 == rb and j2 != 22 for _, r2, j2 in mem):
                xs.setdefault(rb, []).append(wg)
            ws.setdefault(j, []).append(wg)
        for k in range(8):
            items = [('x', key, c) for key, c in xs.items()] + [('w', key, c) for key, c in ws.items()]
            items.sort(key=lambda t: len(t[2]))
            for kind, key, cand in items:
                if len(cand) < 2:
                    continue
                def cost(wg):
                    l = load[wg]
                    slot = lambda kk: 0 if kk < 2 else kk
                    same = sum(1 for q in l if slot(q) == slot(k))
                    near = sum(1 for q in l if abs(slot(q) - slot(k)) == 1 and k >= 2)
                    return (same, len(l) + 0.6 * near, wg)
                best = min(cand, key=cost)
                load[best].append(k)
                if kind == 'x':
                    xm[best] |= 1 << k
                else:
                    wm[best] |= 1 << k
    return xm, wm


def table():
    R = roles()
    xm, wm = assign()
    has_att = {x: any(t and t[1] < 8 for t in R[x::8]) for x in range(8)}
    out = []
    for wg in range(256):
        if R[wg] is None:
            out.append(0x80 if 0xc0 in out else 0xc0)
        else:
            rb, j = R[wg]
            out.append(rb | (int(has_att[wg & 7]) << 4) | (j << 8) | (ROT[0][wg & 7] << 13) | (xm[wg] << 16) | (wm[wg] << 24))
    return out


if __name__ == '__main__':
    xm, wm = assign()
    R = roles()
    c = Counter(bin(xm[w]).count('1') + bin(wm[w]).count('1') for w in range(256))
    print(sorted(c.items()))
    both = sum(1 for w in range(256) if (xm[w] & wm[w]) >> 2)
    init = Counter(bin((xm[w] & 3)).count('1') + bin(wm[w] & 3).count('1') for w in range(256))
    print('both same chunk', both, 'initial', init)
    for x in (0, 4, 7):
        for w in range(x, 256, 8):
            print(x, R[w], format(xm[w], '08b'), format(wm[w], '08b'))
```

```python
from nz import *

PA = lambda b: 40 + 4 * b
PB = lambda b: 42 + 4 * b


def ffn_pre():
    L = ['v_and_b32 v12, 15, v1', 'v_lshlrev_b32 v12, 3, v12', 's_lshr_b32 s60, s56, 1', 's_mul_i32 s60, s60, 768',
         's_add_u32 s60, s60, %d' % (L_PR + 128), 'v_add_u32 v15, s60, v12']
    L += ['ds_read_b64 %s, v15 offset:%d' % (v(PA(b), 2), 128 * b) for b in range(6)]
    L += ['v_lshlrev_b32 v12, 1, v12', 'v_bfe_u32 v13, v1, 4, 1', 'v_mul_u32_u24 v13, %d, v13' % TP, 'v_lshrrev_b32 v14, 5, v1',
          'v_lshl_add_u32 v12, v14, 8, v12', 'v_add_u32 v%d, v12, v13' % V_ST]
    L += ['s_lshr_b32 s60, s56, 1', 's_mul_i32 s60, s60, 6', 's_mul_i32 s61, s57, 12', 's_add_u32 s60, s60, s61', 's_mul_i32 s78, s60, %d' % TP,
          's_and_b32 s60, s56, 1', 's_mul_i32 s60, s60, 3', 's_mul_i32 s61, s58, 6', 's_add_u32 s60, s60, s61', 's_sub_u32 s76, s60, 16']
    L += ['v_mul_f32 v%d, %s, v%d' % (PB(b), fbits(C0), PA(b) + 1) for b in range(6)]
    L += ['v_mul_f32 v%d, v%d, v%d' % (PA(b) + 1, PA(b) + 1, PA(b) + 1) for b in range(6)]
    L += ['v_mul_f32 v%d, v%d, v%d' % (PB(b) + 1, PA(b) + 1, PB(b)) for b in range(6)]
    L += ['v_rcp_f32 v%d, v%d' % (PA(b) + 1, PA(b) + 1) for b in range(6)]
    L += ['v_mul_f32 v%d, %s, v%d' % (PB(b) + 1, fbits(0.044715), PB(b) + 1) for b in range(6)]
    return L


def ffn_epilogue4(P, aux, defer=0, hoisted=True, W=4, nostore=False, cs_rest=None):
    if not hoisted:
        P.I('\n'.join(ffn_pre()))
    T = 64
    blocks = [(uu, bp) for uu in range(3) for bp in range(3)]
    pend = []
    step = W // 4
    for b0 in range(0, 9, step):
        grp = blocks[b0:b0 + step]
        items = []
        for n, (uu, bp) in enumerate(grp):
            if bp == 0 and cs_rest and cs_rest(uu):
                P.I('\n'.join(cs_rest(uu)))
            if bp == 0:
                P.I('s_add_u32 s60, s76, %d\ns_cmp_lt_u32 s60, 118\ns_cselect_b32 s61, s78, 0x%x\ns_lshl_b32 s60, s60, 9\ns_add_u32 s77, s61, s60' % (uu, HUGE))
            P.I('s_add_u32 s%d, s77, %d' % (64 + b0 + n, 2 * bp * TP))
            for q in range(4):
                tb = 2 * bp + (q >> 1)
                items.append(dict(G=ffn_acc(2 * uu, tb) + 2 * (q & 1), U=ffn_acc(2 * uu + 1, tb) + 2 * (q & 1),
                                  cG=cs_ffn(2 * uu) + 2 * (q & 1), cU=cs_ffn(2 * uu + 1) + 2 * (q & 1), tb=tb,
                                  t=T + 16 * ((b0 // step) % 2) + 2 * len(items), o=ffn_acc(2 * uu, 2 * bp) + q))
        L = []
        L += [pk('v_pk_fma_f32', x['G'], x['cG'], PA(x['tb']), x['G'], (None, 0, None)) for x in items]
        L += [pk('v_pk_mul_f32', x['t'], x['G'], x['G']) for x in items]
        L += [pk('v_pk_fma_f32', x['t'], x['t'], PB(x['tb']), PB(x['tb']), (None, 1, 0)) for x in items]
        L += [pk('v_pk_mul_f32', x['t'], x['t'], x['G']) for x in items]
        for x in items:
            L += ['v_exp_f32 v%d, v%d' % (x['t'], x['t']), 'v_exp_f32 v%d, v%d' % (x['t'] + 1, x['t'] + 1)]
        L += [pk('v_pk_fma_f32', x['U'], x['cU'], PA(x['tb']), x['U'], (None, 0, None)) for x in items]
        L += [pk('v_pk_fma_f32', x['t'], x['t'], PA(x['tb']), PA(x['tb']), (None, 1, 1)) for x in items]
        for x in items:
            L += ['v_rcp_f32 v%d, v%d' % (x['t'], x['t']), 'v_rcp_f32 v%d, v%d' % (x['t'] + 1, x['t'] + 1)]
        L += [pk('v_pk_mul_f32', x['U'], x['U'], x['G']) for x in items]
        L += [pk('v_pk_mul_f32', x['t'], x['t'], x['U']) for x in items]
        L += ['v_cvt_pk_bf16_f32 v%d, v%d, v%d' % (x['o'], x['t'], x['t'] + 1) for x in items]
        P.I('\n'.join(L))
        for n in range(len(grp)):
            o = items[4 * n]['o']
            P.I('v_permlane16_swap_b32 v%d, v%d\nv_permlane16_swap_b32 v%d, v%d' % (o, o + 2, o + 1, o + 3))
            if not nostore:
                pend.append('buffer_store_dwordx4 %s, v%d, s[16:19], s%d offen %s' % (v(o, 4), V_ST, 64 + b0 + n, aux))
        if b0 + step > defer:
            for _ in range(2 * step):
                if pend:
                    P.I(pend.pop(0))
    for x in pend:
        P.I(x)


V_VP = 66
SEL = [96, 97, 98, 99]
ROWM, ROWR, LANE = [32, 92], [36, 100], [2, 40]


def att_rd(t):
    b = t & 1
    return ['ds_read_b64 %s, v6 offset:%d' % (v(LANE[b], 2), 128 * t),
            'ds_read_b128 %s, v15 offset:%d' % (v(ROWM[b], 4), 64 * t), 'ds_read_b128 %s, v15 offset:%d' % (v(ROWR[b], 4), 1024 + 64 * t)]


def att_pre():
    L = '''v_and_b32 v4, 15, v1
v_lshrrev_b32 v5, 4, v1
v_lshlrev_b32 v6, 3, v4
v_add_u32 v6, %d, v6
v_lshlrev_b32 v15, 4, v5
v_add_u32 v15, %d, v15''' % (L_PR, L_NM)
    L = L.split('\n') + att_rd(0)
    L += '''v_lshlrev_b32 v12, 4, v4
v_and_b32 v13, 1, v5
v_mul_u32_u24 v13, %d, v13
v_lshrrev_b32 v14, 5, v1
v_lshl_add_u32 v12, v14, 8, v12
v_add_u32 v11, v12, v13
v_and_b32 v12, 1, v1
v_lshl_add_u32 v5, v5, 2, v12
v_add_u32 v13, 2, v5
v_cmp_eq_u32 s[64:65], 1, v12
v_cmp_le_u32 s[66:67], v5, v4
v_cmp_le_u32 s[68:69], v13, v4
v_mov_b32 v12, 0x0c0c0100
v_mov_b32 v13, 0x01000c0c
v_mov_b32 v14, 0x0c0c0c0c
v_cndmask_b32 v12, v12, v13, s[64:65]
v_cndmask_b32 v96, v12, v14, s[66:67]
v_cndmask_b32 v98, v14, v12, s[66:67]
v_mov_b32 v12, 0x0c0c0302
v_mov_b32 v13, 0x03020c0c
v_cndmask_b32 v12, v12, v13, s[64:65]
v_cndmask_b32 v97, v12, v14, s[68:69]
v_cndmask_b32 v99, v14, v12, s[68:69]
v_mov_b32 v12, %s
v_mov_b32 v13, %s
v_mov_b32 v14, %s
s_cmp_eq_u32 s57, 0
s_cselect_b64 s[70:71], -1, 0
s_mul_i32 s60, s57, %d
s_lshl_b32 s61, s58, 2
s_add_u32 s61, s61, s56
s_lshl_b32 s61, s61, 9
s_add_u32 s77, s60, s61''' .replace('%d', '%d').__mod__((TP, fbits(0.25 * LOG2E), fbits(0.25 * LOG2E), fbits(-4e9), 12 * TP)).split('\n')
    return L


def weave(valu, mf, every=2):
    out, mf, run = [], list(mf), 0
    plain = lambda x: not (x.startswith('v_pk_') or x.startswith('s_') or x.startswith('buffer'))
    for i, x in enumerate(valu):
        out.append(x)
        if plain(x):
            run += 1
        if mf and run >= every and i + 1 < len(valu) and plain(valu[i + 1]):
            out.append(mf.pop(0))
            run = 0
    return out + mf


def att_epilogue4(P, aux, hoisted=True):
    if not hoisted:
        P.I('\n'.join(att_pre()))
    for t in range(13):
        b = t & 1
        k, vv = att_acck(t), att_accv(t)
        L = []
        if t < 12:
            L += att_rd(t + 1) + ['s_waitcnt lgkmcnt(3)']
        mats = [(k, 24)] + ([(att_accq(t), 20)] if t >= 1 else [])
        for x, cs in mats:
            L += [pk('v_pk_fma_f32', x + 2 * h, cs + 2 * h, LANE[b], x + 2 * h, (None, 0, None)) for h in range(2)]
        L += [pk('v_pk_fma_f32', vv + 2 * h, ROWM[b] + 2 * h, 28, vv + 2 * h, (None, 0, None)) for h in range(2)]
        for x, cs in mats:
            L += [pk('v_pk_mul_f32', x + 2 * h, x + 2 * h, LANE[b], None, (None, 1)) for h in range(2)]
        L += [pk('v_pk_mul_f32', vv + 2 * h, vv + 2 * h, ROWR[b] + 2 * h) for h in range(2)]
        for x, cs in mats:
            L += ['v_cvt_pk_bf16_f32 v%d, v%d, v%d' % (x, x, x + 1), 'v_cvt_pk_bf16_f32 v%d, v%d, v%d' % (x + 1, x + 2, x + 3)]
        L += ['v_cvt_pk_bf16_f32 v%d, v%d, v%d' % (V_VP + 2 * t, vv, vv + 1), 'v_cvt_pk_bf16_f32 v%d, v%d, v%d' % (V_VP + 2 * t + 1, vv + 2, vv + 3)]
        P.I('\n'.join(L))
    pool = [att_accv(t) for t in range(13)] + [40, 44, 48]
    G = 4
    SP = lambda t: pool[8 * (((t - 1) // G) % 2) + 2 * ((t - 1) % G)]
    SO = lambda t: pool[8 * (((t - 1) // G) % 2) + 2 * ((t - 1) % G) + 1]
    tiles = lambda g: list(range(1 + G * g, 1 + G * g + G))

    def scores(g):
        L = []
        for t in tiles(g):
            q = att_accq(t)
            L.append('v_mfma_f32_16x16x16bf16_1k %s, %s, %s, 0' % (v(SP(t), 4), v(att_acck(t - 1), 2), v(q, 2)))
            L.append('v_mfma_f32_16x16x16bf16_1k %s, %s, %s, 0' % (v(SO(t), 4), v(att_acck(t), 2), v(q, 2)))
        return L

    def select(g):
        L = []
        S = {t: 20 + 4 * i for i, t in enumerate(tiles(g))}
        for t in tiles(g):
            sp, so = SP(t), SO(t)
            L += ['v_cndmask_b32 v%d, v%d, v%d, s[64:65]' % (sp, sp, sp + 1), 'v_cndmask_b32 v%d, v%d, v%d, s[64:65]' % (sp + 2, sp + 2, sp + 3),
                  'v_cndmask_b32 v%d, v%d, v%d, s[64:65]' % (so, so, so + 1), 'v_cndmask_b32 v%d, v%d, v%d, s[64:65]' % (so + 2, so + 2, so + 3)]
            if t == 1:
                L += ['v_cndmask_b32 v%d, v%d, v14, s[70:71]' % (sp, sp), 'v_cndmask_b32 v%d, v%d, v14, s[70:71]' % (sp + 2, sp + 2)]
        for t in tiles(g):
            sp, so = SP(t), SO(t)
            L += ['v_cndmask_b32 v%d, v%d, v%d, s[66:67]' % (S[t], sp, so), 'v_cndmask_b32 v%d, v%d, v%d, s[68:69]' % (S[t] + 1, sp + 2, so + 2)]
        return L

    def soft(g):
        s = [20 + 4 * i for i in range(4)]
        m = [x + 2 for x in s]
        n = [x + 3 for x in s]
        L = ['v_max_f32 v%d, v%d, v%d' % (m[i], s[i], s[i] + 1) for i in range(4)]
        L += ['v_permlane16_swap_b32 v%d, v%d' % (m[0], m[1]), 'v_permlane16_swap_b32 v%d, v%d' % (m[2], m[3]),
              'v_max_f32 v%d, v%d, v%d' % (m[0], m[0], m[1]), 'v_max_f32 v%d, v%d, v%d' % (m[2], m[2], m[3]),
              'v_permlane32_swap_b32 v%d, v%d' % (m[0], m[2]), 'v_max_f32 v%d, v%d, v%d' % (m[0], m[0], m[2]),
              'v_mov_b32 v%d, v%d' % (m[2], m[0]), 'v_permlane32_swap_b32 v%d, v%d' % (m[0], m[2]),
              'v_mov_b32 v%d, v%d' % (m[1], m[0]), 'v_mov_b32 v%d, v%d' % (m[3], m[2]),
              'v_permlane16_swap_b32 v%d, v%d' % (m[0], m[1]), 'v_permlane16_swap_b32 v%d, v%d' % (m[2], m[3])]
        L += ['v_pk_add_f32 %s, %s, %s op_sel_hi:[1,0] neg_lo:[0,1] neg_hi:[0,1]' % (v(s[i], 2), v(s[i], 2), v(m[i], 2)) for i in range(4)]
        L += ['v_pk_mul_f32 %s, %s, v[12:13]' % (v(s[i], 2), v(s[i], 2)) for i in range(4)]
        for i in range(4):
            L += ['v_exp_f32 v%d, v%d' % (s[i], s[i]), 'v_exp_f32 v%d, v%d' % (s[i] + 1, s[i] + 1)]
        L += ['v_cvt_pk_bf16_f32 v%d, v%d, v%d' % (s[i], s[i], s[i] + 1) for i in range(4)]
        for i, t in enumerate(tiles(g)):
            pb = att_accq(t)
            L += ['v_perm_b32 v%d, v%d, v%d, v%d' % (pb + r, s[i], s[i], SEL[r]) for r in range(4)]
        return L

    def pv(g):
        L = []
        for t in tiles(g):
            pb = att_accq(t)
            L += ['v_mfma_f32_16x16x32_bf16 %s, %s, %s, 0' % (v(SO(t), 4), v(V_ONES, 4), v(pb, 4)),
                  'v_mfma_f32_16x16x32_bf16 %s, %s, %s, 0' % (v(SP(t), 4), v(V_VP + 2 * (t - 1), 4), v(pb, 4))]
        return L

    def fin(g):
        ts_ = tiles(g)
        L = ['v_rcp_f32 v%d, v%d' % (SO(t), SO(t)) for t in ts_]
        for t in ts_:
            L += ['v_pk_mul_f32 %s, %s, %s op_sel_hi:[1,0]' % (v(SP(t), 2), v(SP(t), 2), v(SO(t), 2)),
                  'v_pk_mul_f32 %s, %s, %s op_sel_hi:[1,0]' % (v(SP(t) + 2, 2), v(SP(t) + 2, 2), v(SO(t), 2))]
        for t in ts_:
            o = att_accq(t - ((t - 1) & 1)) + 2 * ((t - 1) & 1)
            L += ['v_cvt_pk_bf16_f32 v%d, v%d, v%d' % (o, SP(t), SP(t) + 1), 'v_cvt_pk_bf16_f32 v%d, v%d, v%d' % (o + 1, SP(t) + 2, SP(t) + 3)]
        return L

    def put(g):
        L = []
        for t in tiles(g)[::2]:
            o = att_accq(t)
            L += ['s_add_u32 s60, s77, %d' % ((t - 1) * TP), 'v_permlane16_swap_b32 v%d, v%d' % (o, o + 2), 'v_permlane16_swap_b32 v%d, v%d' % (o + 1, o + 3),
                  'buffer_store_dwordx4 %s, v%d, s[16:19], s60 offen %s' % (v(o, 4), V_ST, aux)]
        return L
    seq = scores(0) + weave(select(0), scores(1)) + soft(0)
    seq += weave(select(1), pv(0)) + fin(0) + put(0) + weave(soft(1), scores(2))
    seq += weave(select(2), pv(1)) + fin(1) + put(1) + soft(2) + pv(2) + fin(2) + put(2)
    P.I('\n'.join(seq))
```

```python
from p1b import *
from p1e import TP, ACT_BYTES, fbits, LOG2E, C0, C1, V_ST
from p0 import wave_sum, rnd_bf16
import p2

ACT_OFF = 0x400000
STATS_OFF = 0x100000
FLAGS_OFF = 0x200000
SRD_AUX = 28
SRD_DBG = 32
L_NM, L_RS = 153600, 153600 + 1024
LDS_BYTES = 153600 + 2048
V_ONES = 16
SPIN_MAX = 40000


def srd_off(P, r, ptr, off, size):
    P.I('s_add_u32 s%d, s%d, 0x%x\ns_addc_u32 s%d, s%d, 0\ns_mov_b32 s%d, 0x%x\ns_mov_b32 s%d, 0x20000' % (r, ptr, off, r + 1, ptr + 1, r + 2, size, r + 3))


def store_addr_setup(P):
    P.I('''v_and_b32 v12, 15, v1
v_lshlrev_b32 v12, 4, v12
v_bfe_u32 v13, v1, 4, 1
v_mul_u32_u24 v13, %d, v13
v_lshrrev_b32 v14, 5, v1
v_lshl_add_u32 v12, v14, 8, v12
v_add_u32 v%d, v12, v13''' % (TP, V_ST))


XR0, XR1 = 16, 20
XF0, XF1 = 40, 48


def p0_loads(P, has_flag=True):
    P.I('''s_lshl_b32 s60, s2, 2
s_add_u32 s60, s60, s56
s_lshl_b32 s60, s60, 11
v_lshlrev_b32 v14, 4, v1
buffer_load_dwordx4 v[16:19], v14, s[4:7], s60 offen
buffer_load_dwordx4 v[20:23], v14, s[4:7], s60 offen offset:1024''')


def flag_offset(P, dst):
    P.I('s_mul_i32 s%d, s57, 23\ns_add_u32 s%d, s%d, s58\ns_lshl_b32 s%d, s%d, 7\ns_lshl_b32 s63, s56, 2\ns_add_u32 s%d, s%d, s63\ns_add_u32 s%d, s%d, 0x%x' % ((dst,) * 9 + (FLAGS_OFF - STATS_OFF,)))


def flag_store(P, val, data=24):
    d, z = (24, 25) if data == 24 else (11, 12)
    P.I('v_mov_b32 v%d, %d\nv_mov_b32 v%d, 0\ns_mov_b64 exec, 1' % (d, val, z))
    P.I('buffer_store_dword v%d, v%d, s[28:31], s62 offen sc0 sc1 ;@def FL' % (d, z))
    P.I('s_mov_b64 exec, -1')


def p0_stats(P):
    X, F, S, Q, T = [XR0, XR1], [XF0, XF1], [30, 31], [32, 33], [34, 35]
    for i in range(2):
        for d in range(4):
            P.I('v_lshlrev_b32 v%d, 16, v%d\nv_and_b32 v%d, 0xffff0000, v%d' % (F[i] + 2 * d, X[i] + d, F[i] + 2 * d + 1, X[i] + d))
        P.I('v_add_f32 v%d, v%d, v%d' % (S[i], F[i], F[i] + 1))
        for d in range(2, 8):
            P.I('v_add_f32 v%d, v%d, v%d' % (S[i], S[i], F[i] + d))
    wave_sum(P, S, T)
    for i in range(2):
        P.I('v_mul_f32 v%d, 0x3b000000, v%d' % (S[i], S[i]))
    for d in range(8):
        for i in range(2):
            P.I('v_sub_f32 v%d, v%d, v%d' % (T[i], F[i] + d, S[i]))
        for i in range(2):
            P.I(('v_mul_f32 v%d, v%d, v%d' if d == 0 else 'v_fmac_f32 v%d, v%d, v%d') % (Q[i], T[i], T[i]))
    wave_sum(P, Q, T)
    steps = ['v_mul_f32 v%(q)d, 0x3b000000, v%(q)d', 'v_cvt_pk_bf16_f32 v%(q)d, v%(q)d, v%(q)d', 'v_lshlrev_b32 v%(q)d, 16, v%(q)d',
             'v_add_f32 v%%(q)d, %s, v%%(q)d' % fbits(1e-5), 'v_cvt_pk_bf16_f32 v%(q)d, v%(q)d, v%(q)d', 'v_lshlrev_b32 v%(q)d, 16, v%(q)d',
             'v_sqrt_f32 v%(q)d, v%(q)d', 'v_cvt_pk_bf16_f32 v%(s)d, v%(s)d, v%(s)d', 'v_cvt_pk_bf16_f32 v%(q)d, v%(q)d, v%(q)d',
             'v_lshlrev_b32 v%(s)d, 16, v%(s)d', 'v_lshlrev_b32 v%(q)d, 16, v%(q)d']
    for st in steps:
        for i in range(2):
            P.I(st % dict(q=Q[i], s=S[i]))
    P.I('s_lshl_b32 s60, s2, 7\ns_lshl_b32 s61, s56, 3\ns_add_u32 s60, s60, s61\nv_mov_b32 v25, 0\ns_mov_b64 exec, 1')
    P.I('buffer_store_dwordx2 v[30:31], v25, s[28:31], s60 offen sc0 sc1')
    P.I('buffer_store_dwordx2 v[32:33], v25, s[28:31], s60 offen offset:32 sc0 sc1')
    P.I('s_mov_b64 exec, -1')


def arrive(P):
    P.I('s_and_b32 s60, s2, 63\ns_lshl_b32 s60, s60, 2\ns_cmp_eq_u32 s56, 0\ns_cselect_b32 s60, s60, 0x%x' % HUGE)
    P.I('v_mov_b32 v24, 1\nv_mov_b32 v25, 0\ns_mov_b64 exec, 1')
    P.I('buffer_atomic_add v24, v25, s[32:35], s60 offen sc1')
    P.I('s_mov_b64 exec, -1')


def counter_load(P):
    P.I('v_lshlrev_b32 v26, 2, v1\ns_cmp_eq_u32 s56, 0\ns_cselect_b32 s72, 0, 0x%x\ns_cselect_b32 s85, 4, 0' % HUGE)
    P.I('buffer_load_dword v27, v26, s[32:35], s72 offen sc1')


def counter_wait(P, tag):
    P.I('v_cmp_gt_u32 vcc, s85, v27\ns_mov_b32 s61, 0')
    P.I('s_cbranch_vccz L_cok%s' % tag)
    P.cond_begin()
    P.I('L_cspin%s:' % tag)
    P.I('s_sleep 4\nbuffer_load_dword v27, v26, s[32:35], s72 offen sc1\ns_add_u32 s61, s61, 1\ns_waitcnt vmcnt(0)')
    P.I('v_cmp_gt_u32 vcc, s85, v27\ns_cmp_ge_u32 s61, %d\ns_cbranch_scc1 L_cok%s\ns_nop 2\ns_cbranch_vccnz L_cspin%s' % (SPIN_MAX, tag, tag))
    P.cond_end()
    P.I('L_cok%s:' % tag)


def stats_load(P):
    P.I('''s_mul_i32 s60, s57, 24
s_sub_u32 s60, s60, 2
v_lshrrev_b32 v26, 1, v1
v_add_u32 v26, s60, v26
v_max_i32 v26, 0, v26
v_min_u32 v26, 0xff, v26
v_lshlrev_b32 v26, 7, v26
v_and_b32 v27, 1, v1
v_lshl_add_u32 v26, v27, 4, v26
s_and_b32 s61, s56, 1
s_lshl_b32 s61, s61, 5
buffer_load_dwordx4 v[28:31], v26, s[28:31], s61 offen sc0 sc1''')


def stats_to_lds(P):
    P.I('s_and_b32 s61, s56, 1\ns_cmp_eq_u32 s61, 1\ns_cselect_b64 s[62:63], -1, 0\ns_lshl_b32 s61, s61, 10\ns_add_u32 s61, s61, %d' % L_NM)
    for r in range(4):
        P.I('v_rcp_f32 v%d, v%d' % (32 + r, 28 + r))
    for r in range(4):
        P.I('v_xor_b32 v%d, 0x80000000, v%d' % (28 + r, 28 + r))
    for r in range(4):
        P.I('v_cndmask_b32 v%d, v%d, v%d, s[62:63]' % (28 + r, 28 + r, 32 + r))
    P.I('v_lshl_add_u32 v26, v1, 4, s61\nds_write_b128 v26, v[28:31]\ns_waitcnt lgkmcnt(0)')


def w2_l2_prefetch(P):
    P.I('''s_lshr_b32 s60, s2, 3
s_mul_i32 s60, s60, 59
v_add_u32 v36, s60, v1
v_cmp_gt_u32 vcc, 59, v1
v_mov_b32 v37, 0x%x
v_subrev_u32 v38, 512, v36
v_lshlrev_b32 v36, 10, v36
v_lshlrev_b32 v38, 10, v38
v_cndmask_b32 v36, v37, v36, vcc
v_cndmask_b32 v38, v37, v38, vcc
v_min_u32 v38, v37, v38
s_lshl_b32 s61, s56, 8''' % HUGE)
    srd(P, 8, 40, 0x80000)
    srd(P, 12, 48, 0x158000)
    for i in range(2):
        P.I('buffer_load_dword v9, v36, s[8:11], s61 offen offset:%d' % (128 * i))
        P.I('buffer_load_dword v9, v38, s[12:15], s61 offen offset:%d' % (128 * i))


def w2_l2_prefetch84(P):
    P.I('''s_lshr_b32 s60, s2, 3
s_mul_i32 s60, s60, 59
v_add_u32 v36, s60, v1
v_cmp_gt_u32 vcc, 59, v1
v_mov_b32 v37, 0x%x
v_subrev_u32 v38, 512, v36
v_lshlrev_b32 v36, 10, v36
v_lshlrev_b32 v38, 10, v38
v_cndmask_b32 v36, v37, v36, vcc
v_cndmask_b32 v38, v37, v38, vcc
v_min_u32 v38, v37, v38
s_and_b32 s61, s2, 1
s_lshl_b32 s61, s61, 2
s_add_u32 s61, s61, s56
s_lshl_b32 s61, s61, 7''' % HUGE)
    srd(P, 8, 40, 0x80000)
    srd(P, 12, 48, 0x158000)
    P.I('buffer_load_dword v9, v36, s[8:11], s61 offen\nbuffer_load_dword v9, v38, s[12:15], s61 offen')


def w2_first_touch(P):
    P.I('''s_lshl_b32 s60, s2, 2
s_add_u32 s60, s60, s56
s_mul_i32 s60, s60, 15
v_add_u32 v26, s60, v1
v_cmp_gt_u32 vcc, 15, v1
v_mov_b32 v27, 0x%x
v_subrev_u32 v28, 4096, v26
v_lshlrev_b32 v26, 7, v26
v_lshlrev_b32 v28, 7, v28
v_cndmask_b32 v26, v27, v26, vcc
v_cndmask_b32 v28, v27, v28, vcc
v_min_u32 v28, v27, v28''' % HUGE)
    srd(P, 20, 40, 0x80000)
    srd(P, 24, 48, 0x158000)
    P.I('buffer_load_dword v9, v26, s[20:23], 0 offen\nbuffer_load_dword v9, v28, s[24:27], 0 offen')


def w1_first_touch(P):
    P.I('''s_lshl_b32 s60, s2, 2
s_add_u32 s60, s60, s56
s_mul_i32 s60, s60, 12
v_add_u32 v26, s60, v1
v_cmp_gt_u32 vcc, 12, v1
v_mov_b32 v27, 0x%x
v_lshlrev_b32 v26, 7, v26
v_cndmask_b32 v26, v27, v26, vcc''' % HUGE)
    srd(P, 20, 38, 0x180000)
    P.I('buffer_load_dword v9, v26, s[20:23], 0 offen')
    srd(P, 20, 44, 0x158000)
    P.I('buffer_load_dword v9, v26, s[20:23], 0 offen')
    srd(P, 20, 46, 0x158000)
    P.I('buffer_load_dword v9, v26, s[20:23], 0 offen')


def prewrite_setup(P, role):
    P.I('''v_and_b32 v41, 15, v1
v_lshlrev_b32 v41, 4, v41
v_bfe_u32 v42, v1, 4, 1
v_mul_u32_u24 v42, %d, v42
v_lshrrev_b32 v43, 5, v1
v_lshl_add_u32 v41, v43, 8, v41
v_add_u32 v40, v41, v42
v_mov_b32 v44, -1
v_mov_b32 v45, -1
v_mov_b32 v46, -1
v_mov_b32 v47, -1''' % TP)
    if role == 'ffn':
        P.I('''s_lshr_b32 s60, s56, 1
s_mul_i32 s60, s60, 6
s_mul_i32 s61, s57, 12
s_add_u32 s60, s60, s61
s_mul_i32 s78, s60, %d
s_and_b32 s60, s56, 1
s_mul_i32 s60, s60, 3
s_mul_i32 s61, s58, 6
s_add_u32 s60, s60, s61
s_sub_u32 s77, s60, 16''' % TP)
    else:
        P.I('''s_mul_i32 s60, s57, %d
s_lshl_b32 s61, s58, 2
s_add_u32 s61, s61, s56
s_lshl_b32 s61, s61, 9
s_add_u32 s78, s60, s61''' % (12 * TP))


def prewrite(P, role, part, aux):
    if role == 'ffn':
        P.I('s_add_u32 s60, s77, %d\ns_cmp_lt_u32 s60, 118\ns_cselect_b32 s61, s78, 0x%x\ns_lshl_b32 s60, s60, 9\ns_add_u32 s61, s61, s60' % (part, HUGE))
        for bp in range(3):
            P.I('s_add_u32 s60, s61, %d\nbuffer_store_dwordx4 v[44:47], v40, s[16:19], s60 offen %s' % (2 * bp * TP, aux))
    else:
        for q in range(2):
            P.I('s_add_u32 s60, s78, %d\nbuffer_store_dwordx4 v[44:47], v40, s[16:19], s60 offen %s' % ((4 * part + 2 * q) * TP, aux))


def flags_poll(P):
    P.I('''s_mul_i32 s60, s%d, 21846
s_lshr_b32 s60, s60, 16
s_mul_i32 s60, s60, %d
s_add_u32 s60, s60, 0x%x
v_min_u32 v26, 22, v1
v_lshlrev_b32 v26, 7, v26
s_mov_b32 s61, 0''' % (p2.S_TB2, 23 * 128, FLAGS_OFF - STATS_OFF))
    P.I('L_fspin:')
    P.I('buffer_load_dwordx4 v[28:31], v26, s[28:31], s60 offen sc0 sc1\ns_add_u32 s61, s61, 1\ns_waitcnt vmcnt(0)')
    P.I('v_and_b32 v28, v28, v29\nv_and_b32 v30, v30, v31\nv_and_b32 v28, v28, v30\nv_cmp_ne_u32 vcc, 1, v28')
    P.I('s_cmp_ge_u32 s61, %d\ns_cbranch_scc1 L_fok\ns_nop 2\ns_cbranch_vccz L_fok\ns_sleep 1\ns_branch L_fspin' % SPIN_MAX)
    P.I('L_fok:')


def cs_ffn(a_):
    return 20 + 4 * a_ if a_ < 4 else 248 + 4 * (a_ - 4)


def ones_setup(P):
    for r in range(4):
        P.I('v_mov_b32 v%d, 0x3f803f80' % (V_ONES + r))


def extra_ffn(kk, a_, A):
    return [mfma(cs_ffn(a_), A, V_ONES, kk == 0)]


def extra_att(kk, t, wb):
    if t == 1:
        return [mfma(24, wb + 4, V_ONES, kk == 0)]
    if t == 2:
        return [mfma(28, V_ONES, wb + 8, kk == 0)]
    if t == 3:
        return [mfma(20, wb, V_ONES, kk == 0)]
    return []


def bc(pair_reg, idx):
    return v(pair_reg, 2), idx


def pk(op, d, a_, b_, c_=None, bsel=(None, None, None)):
    srcs = [a_, b_] + ([c_] if c_ is not None else [])
    lo = [0 if bsel[i] is None else bsel[i] for i in range(len(srcs))]
    hi = [1 if bsel[i] is None else bsel[i] for i in range(len(srcs))]
    t = '%s %s, %s' % (op, v(d, 2), ', '.join(x if isinstance(x, str) else v(x, 2) for x in srcs))
    if any(lo):
        t += ' op_sel:[%s]' % ','.join(map(str, lo))
    if not all(hi):
        t += ' op_sel_hi:[%s]' % ','.join(map(str, hi))
    return t


def ffn_epilogue2(P, aux, defer=0):
    PA = lambda b: 40 + 4 * b
    PB = lambda b: 42 + 4 * b
    P.I('v_and_b32 v12, 15, v1\nv_lshlrev_b32 v12, 2, v12\ns_lshr_b32 s60, s56, 1\ns_mul_i32 s60, s60, 384\ns_add_u32 s60, s60, %d\nv_add_u32 v12, s60, v12' % (L_NM + 64))
    for b in range(6):
        P.I('ds_read_b32 v%d, v12 offset:%d\nds_read_b32 v%d, v12 offset:%d' % (PA(b), 64 * b, PB(b), 1024 + 64 * b))
    store_addr_setup(P)
    P.I('''s_lshr_b32 s60, s56, 1
s_mul_i32 s60, s60, 6
s_mul_i32 s61, s57, 12
s_add_u32 s60, s60, s61
s_mul_i32 s78, s60, %d
s_and_b32 s60, s56, 1
s_mul_i32 s60, s60, 3
s_mul_i32 s61, s58, 6
s_add_u32 s60, s60, s61
s_sub_u32 s76, s60, 16''' % TP)
    for b in range(6):
        P.I('v_mul_f32 v%d, v%d, v%d' % (PA(b) + 1, PB(b), PB(b)))
    for b in range(6):
        P.I('v_mul_f32 v%d, v%d, v%d' % (PB(b) + 1, PA(b) + 1, PB(b)))
    for b in range(6):
        P.I('v_rcp_f32 v%d, v%d' % (PA(b) + 1, PA(b) + 1))
    for b in range(6):
        P.I('v_mul_f32 v%d, %s, v%d\nv_mul_f32 v%d, %s, v%d' % (PB(b), fbits(C0), PB(b), PB(b) + 1, fbits(C1), PB(b) + 1))
    T = 64
    blk = 0
    pend = []
    for uu in range(3):
        P.I('s_add_u32 s60, s76, %d\ns_cmp_lt_u32 s60, 118\ns_cselect_b32 s61, s78, 0x%x\ns_lshl_b32 s60, s60, 9\ns_add_u32 s77, s61, s60' % (uu, HUGE))
        for bp in range(3):
            tb = [2 * bp + (q >> 1) for q in range(4)]
            G = [ffn_acc(2 * uu, tb[q]) + 2 * (q & 1) for q in range(4)]
            U = [ffn_acc(2 * uu + 1, tb[q]) + 2 * (q & 1) for q in range(4)]
            cG = [cs_ffn(2 * uu) + 2 * (q & 1) for q in range(4)]
            cU = [cs_ffn(2 * uu + 1) + 2 * (q & 1) for q in range(4)]
            t = [T + 8 * (blk % 2) + 2 * q for q in range(4)]
            o = G[0]
            R = range(4)
            L = []
            L += [pk('v_pk_fma_f32', G[q], cG[q], PA(tb[q]), G[q], (None, 0, None)) for q in R]
            L += [pk('v_pk_fma_f32', U[q], cU[q], PA(tb[q]), U[q], (None, 0, None)) for q in R]
            L += [pk('v_pk_mul_f32', t[q], G[q], G[q]) for q in R]
            L += [pk('v_pk_fma_f32', t[q], t[q], PB(tb[q]), PB(tb[q]), (None, 1, 0)) for q in R]
            L += [pk('v_pk_mul_f32', t[q], t[q], G[q]) for q in R]
            for q in R:
                L += ['v_exp_f32 v%d, v%d' % (t[q], t[q]), 'v_exp_f32 v%d, v%d' % (t[q] + 1, t[q] + 1)]
            L += [pk('v_pk_fma_f32', t[q], t[q], PA(tb[q]), PA(tb[q]), (None, 1, 1)) for q in R]
            for q in R:
                L += ['v_rcp_f32 v%d, v%d' % (t[q], t[q]), 'v_rcp_f32 v%d, v%d' % (t[q] + 1, t[q] + 1)]
            L += [pk('v_pk_mul_f32', t[q], t[q], G[q]) for q in R]
            L += [pk('v_pk_mul_f32', t[q], t[q], U[q]) for q in R]
            L += ['v_cvt_pk_bf16_f32 v%d, v%d, v%d' % (o + q, t[q], t[q] + 1) for q in R]
            P.I('\n'.join(L))
            P.I('s_add_u32 s%d, s77, %d' % (64 + blk, 2 * bp * TP))
            P.I('v_permlane16_swap_b32 v%d, v%d\nv_permlane16_swap_b32 v%d, v%d' % (o, o + 2, o + 1, o + 3))
            pend.append('buffer_store_dwordx4 %s, v%d, s[16:19], s%d offen %s' % (v(o, 4), V_ST, 64 + blk, aux))
            blk += 1
            if blk > defer:
                for _ in range(2):
                    if pend:
                        P.I(pend.pop(0))
    for x in pend:
        P.I(x)


V_VP = 66
V_MP0, V_MP1, V_MO0, V_MO1 = 96, 97, 98, 99


def att_epilogue2(P, aux):
    ROWM, ROWR, LANE = [32, 92], [36, 100], [64, 2]
    P.I('v_and_b32 v4, 15, v1\nv_lshrrev_b32 v5, 4, v1\nv_lshlrev_b32 v6, 2, v4\nv_add_u32 v6, %d, v6\nv_lshlrev_b32 v7, 4, v5\nv_add_u32 v7, %d, v7' % (L_NM, L_NM))

    def rd(t):
        b = t & 1
        return ['ds_read_b32 v%d, v6 offset:%d' % (LANE[b], 64 * t), 'ds_read_b32 v%d, v6 offset:%d' % (LANE[b] + 1, 1024 + 64 * t),
                'ds_read_b128 %s, v7 offset:%d' % (v(ROWM[b], 4), 64 * t), 'ds_read_b128 %s, v7 offset:%d' % (v(ROWR[b], 4), 1024 + 64 * t)]
    P.I('\n'.join(rd(0)))
    store_addr_setup(P)
    P.I('''v_and_b32 v8, 1, v1
v_lshl_add_u32 v5, v5, 2, v8
v_add_u32 v9, 2, v5
v_cmp_eq_u32 s[64:65], 1, v8
v_cmp_le_u32 s[66:67], v5, v4
v_cmp_le_u32 s[68:69], v9, v4
v_mov_b32 v8, 0xffff
v_mov_b32 v9, 0xffff0000
v_cndmask_b32 v8, v8, v9, s[64:65]
v_cndmask_b32 v98, 0, v8, s[66:67]
v_cndmask_b32 v99, 0, v8, s[68:69]
v_xor_b32 v96, v98, v8
v_xor_b32 v97, v99, v8
v_mov_b32 v12, %s
v_mov_b32 v13, %s
v_mov_b32 v14, %s
s_cmp_eq_u32 s57, 0
s_cselect_b64 s[70:71], -1, 0
s_mul_i32 s60, s57, %d
s_lshl_b32 s61, s58, 2
s_add_u32 s61, s61, s56
s_lshl_b32 s61, s61, 9
s_add_u32 s77, s60, s61''' % (fbits(0.25 * LOG2E), fbits(0.25 * LOG2E), fbits(-4e9), 12 * TP))
    for t in range(13):
        b = t & 1
        k, vv = att_acck(t), att_accv(t)
        L = []
        if t < 12:
            L += rd(t + 1)
        mats = [(k, 24)] + ([(att_accq(t), 20)] if t >= 1 else [])
        for x, cs in mats:
            L += [pk('v_pk_fma_f32', x + 2 * h, cs + 2 * h, LANE[b], x + 2 * h, (None, 0, None)) for h in range(2)]
        L += [pk('v_pk_fma_f32', vv + 2 * h, ROWM[b] + 2 * h, 28, vv + 2 * h, (None, 0, None)) for h in range(2)]
        for x, cs in mats:
            L += [pk('v_pk_mul_f32', x + 2 * h, x + 2 * h, LANE[b], None, (None, 1)) for h in range(2)]
        L += [pk('v_pk_mul_f32', vv + 2 * h, vv + 2 * h, ROWR[b] + 2 * h) for h in range(2)]
        for x, cs in mats:
            L += ['v_cvt_pk_bf16_f32 v%d, v%d, v%d' % (x, x, x + 1), 'v_cvt_pk_bf16_f32 v%d, v%d, v%d' % (x + 1, x + 2, x + 3)]
        L += ['v_cvt_pk_bf16_f32 v%d, v%d, v%d' % (V_VP + 2 * t, vv, vv + 1), 'v_cvt_pk_bf16_f32 v%d, v%d, v%d' % (V_VP + 2 * t + 1, vv + 2, vv + 3)]
        P.I('\n'.join(L))
    pool = [att_accv(t) for t in range(13)] + [40, 44, 48]
    G = 4
    SP = lambda t: pool[8 * (((t - 1) // G) % 2) + 2 * ((t - 1) % G)]
    SO = lambda t: pool[8 * (((t - 1) // G) % 2) + 2 * ((t - 1) % G) + 1]

    def scores(t0):
        L = []
        for t in range(t0, t0 + G):
            q = att_accq(t)
            L.append('v_mfma_f32_16x16x16bf16_1k %s, %s, %s, 0' % (v(SP(t), 4), v(att_acck(t - 1), 2), v(q, 2)))
            L.append('v_mfma_f32_16x16x16bf16_1k %s, %s, %s, 0' % (v(SO(t), 4), v(att_acck(t), 2), v(q, 2)))
        return L
    P.I('\n'.join(scores(1) + scores(1 + G)))
    for t0 in range(1, 13, G):
        ts_ = list(range(t0, t0 + G))
        S = {t: 20 + 4 * (t - t0) for t in ts_}
        L = []
        for t in ts_:
            sp, so = SP(t), SO(t)
            L += ['v_cndmask_b32 v%d, v%d, v%d, s[64:65]' % (sp, sp, sp + 1),
                  'v_cndmask_b32 v%d, v%d, v%d, s[64:65]' % (sp + 2, sp + 2, sp + 3),
                  'v_cndmask_b32 v%d, v%d, v%d, s[64:65]' % (so, so, so + 1),
                  'v_cndmask_b32 v%d, v%d, v%d, s[64:65]' % (so + 2, so + 2, so + 3)]
            if t == 1:
                L += ['v_cndmask_b32 v%d, v%d, v14, s[70:71]' % (sp, sp),
                      'v_cndmask_b32 v%d, v%d, v14, s[70:71]' % (sp + 2, sp + 2)]
        for t in ts_:
            sp, so = SP(t), SO(t)
            L += ['v_cndmask_b32 v%d, v%d, v%d, s[66:67]' % (S[t], sp, so),
                  'v_cndmask_b32 v%d, v%d, v%d, s[68:69]' % (S[t] + 1, sp + 2, so + 2)]
        L += ['v_max_f32 v%d, v%d, v%d' % (S[t] + 2, S[t], S[t] + 1) for t in ts_]
        for sw in ('v_permlane16_swap_b32', 'v_permlane32_swap_b32'):
            L += ['v_mov_b32 v%d, v%d' % (S[t] + 3, S[t] + 2) for t in ts_]
            L += ['%s v%d, v%d' % (sw, S[t] + 2, S[t] + 3) for t in ts_]
            L += ['v_max_f32 v%d, v%d, v%d' % (S[t] + 2, S[t] + 2, S[t] + 3) for t in ts_]
        L += ['v_pk_add_f32 %s, %s, %s op_sel_hi:[1,0] neg_lo:[0,1] neg_hi:[0,1]' % (v(S[t], 2), v(S[t], 2), v(S[t] + 2, 2)) for t in ts_]
        L += ['v_pk_mul_f32 %s, %s, v[12:13]' % (v(S[t], 2), v(S[t], 2)) for t in ts_]
        for t in ts_:
            L += ['v_exp_f32 v%d, v%d' % (S[t], S[t]), 'v_exp_f32 v%d, v%d' % (S[t] + 1, S[t] + 1)]
        for t in ts_:
            L += ['v_cvt_pk_bf16_f32 v%d, v%d, v%d' % (S[t], S[t], S[t]), 'v_cvt_pk_bf16_f32 v%d, v%d, v%d' % (S[t] + 1, S[t] + 1, S[t] + 1)]
        for t in ts_:
            pb = att_accq(t)
            L += ['v_and_b32 v%d, v%d, v%d' % (pb, S[t], V_MP0), 'v_and_b32 v%d, v%d, v%d' % (pb + 1, S[t] + 1, V_MP1),
                  'v_and_b32 v%d, v%d, v%d' % (pb + 2, S[t], V_MO0), 'v_and_b32 v%d, v%d, v%d' % (pb + 3, S[t] + 1, V_MO1)]
        for t in ts_:
            pb = att_accq(t)
            L += ['v_mfma_f32_16x16x32_bf16 %s, %s, %s, 0' % (v(SO(t), 4), v(V_ONES, 4), v(pb, 4)),
                  'v_mfma_f32_16x16x32_bf16 %s, %s, %s, 0' % (v(SP(t), 4), v(V_VP + 2 * (t - 1), 4), v(pb, 4))]
        L += ['v_rcp_f32 v%d, v%d' % (SO(t), SO(t)) for t in ts_]
        for t in ts_:
            L += ['v_pk_mul_f32 %s, %s, %s op_sel_hi:[1,0]' % (v(SP(t), 2), v(SP(t), 2), v(SO(t), 2)),
                  'v_pk_mul_f32 %s, %s, %s op_sel_hi:[1,0]' % (v(SP(t) + 2, 2), v(SP(t) + 2, 2), v(SO(t), 2))]
        for t in ts_:
            o = att_accq(t - ((t - 1) & 1)) + 2 * ((t - 1) & 1)
            L += ['v_cvt_pk_bf16_f32 v%d, v%d, v%d' % (o, SP(t), SP(t) + 1), 'v_cvt_pk_bf16_f32 v%d, v%d, v%d' % (o + 1, SP(t) + 2, SP(t) + 3)]
        if t0 == 1:
            L += scores(1 + 2 * G)
        for t in ts_[::2]:
            o = att_accq(t)
            L += ['s_add_u32 s60, s77, %d' % ((t - 1) * TP),
                  'v_permlane16_swap_b32 v%d, v%d' % (o, o + 2), 'v_permlane16_swap_b32 v%d, v%d' % (o + 1, o + 3),
                  'buffer_store_dwordx4 %s, v%d, s[16:19], s60 offen %s' % (v(o, 4), V_ST, aux)]
        P.I('\n'.join(L))
```

```python
import sys, re
from fz import *
import p2, duty
from p2 import p2_decode, p2_w_setup, p2_b_setup, p2_x_setup, p2_main, p2_tail, p2_w_dma

NAME = 'parallel_sum__sliding_local_dilated__geglu_ffn__prompt'
HEADER = open('cdna_kernels/%s.s.ref' % NAME).read().split('; Override launch')[0]


def kd(name, vgpr, accum):
    return '''.section .rodata,"a"
.p2align 6
.amdhsa_kernel %s
  .amdhsa_next_free_vgpr %d
  .amdhsa_next_free_sgpr 102
  .amdhsa_accum_offset %d
  .amdhsa_group_segment_fixed_size 0
  .amdhsa_kernarg_size 80
  .amdhsa_user_sgpr_count 2
  .amdhsa_user_sgpr_kernarg_segment_ptr 1
  .amdhsa_system_sgpr_workgroup_id_x 1
  .amdhsa_float_denorm_mode_32 3
.end_amdhsa_kernel
.text
''' % (name, vgpr, accum)


def head(name):
    return '.globl %s\n.p2align 8\n.type %s,@function\n' % (name, name)


class TS:
    NAMES = ['setup', 'c0', 'main', 'epi', 'flag', 'p2go', 'p2main', 'issued', 'w2iss', 'polled', 'cw0', 'cw1']

    def __init__(self, on):
        self.on = on

    def __call__(self, P, name):
        if self.on and name in self.NAMES:
            P.I('%s s[80:81]\ns_waitcnt lgkmcnt(0)\ns_mov_b32 s%d, s80' % ('s_memrealtime' if self.on == 'rt' else 's_memtime', 86 + self.NAMES.index(name)))

    def start(self, P):
        if self.on:
            P.I('s_memtime s[80:81]\ns_memrealtime s[82:83]')
            for i in range(len(self.NAMES)):
                P.I('s_mov_b32 s%d, 0' % (86 + i))

    def save_start(self, P):
        if self.on:
            P.I('s_mov_b32 s100, s80\ns_mov_b32 s101, s82')

    def dump(self, P):
        if not self.on:
            return
        P.I('s_waitcnt vmcnt(0)\ns_memtime s[80:81]\ns_memrealtime s[82:83]\ns_waitcnt lgkmcnt(0)\ns_mov_b32 s98, s80\ns_mov_b32 s99, s82')
        srd_off(P, 32, 54, 0x4000000, 0x40000)
        P.I('s_lshl_b32 s60, s2, 10\ns_lshl_b32 s61, s79, 7\ns_add_u32 s60, s60, s61')
        for i in range(16):
            P.I('v_mov_b32 v12, s%d\nv_mov_b32 v13, %d\nbuffer_store_dword v12, v13, s[32:35], s60 offen' % (86 + i, 4 * i))


OPT = dict(split=8, w2pf=True, st_aux='sc0 sc1', ld_aux='sc1', rot=None, w2early=6, out_aux='', w2ft=False, defer=4, cs=5, nocs=False, w1ft=False)


def build(timing=False, **kw):
    o = dict(OPT)
    o.update(kw)
    AUX['rot'] = o['rot']
    duty.ROT[0] = o['rot'] or [0] * 8
    kn = NAME + '_kernel'
    P = Prog()
    ts = TS(timing)
    P.I(kn + ':')
    ts.start(P)
    P.I('s_load_dwordx16 s[36:51], s[0:1], 0\ns_load_dwordx4 s[52:55], s[0:1], 64')
    P.I('s_cmp_ge_u32 s2, 256\ns_cbranch_scc1 L_end')
    table_load(P)
    wave_split(P)
    code_prefetch2(P, 100)
    P.I('s_waitcnt lgkmcnt(0)')
    ts.save_start(P)
    table_decode(P)
    srd(P, SRD_X, 36, 2048 * 1024)
    srd_off(P, SRD_AUX, 54, STATS_OFF, 0x200000)
    P.I('s_cmp_ge_u32 s79, 4\ns_cbranch_scc1 L_loader')
    srd_off(P, 16, 54, ACT_OFF, ACT_BYTES)
    P.I('s_bitcmp1_b32 s59, 7\ns_cbranch_scc1 L_cidle')
    P.I('s_cmp_lt_u32 s58, 8\ns_cbranch_scc1 L_catt')
    for role in ('ffn', 'att'):
        if role == 'att':
            P.new_path()
            P.I('L_catt:')
        frag_addr_setup(P, role)
        ones_setup(P)
        P.I('s_waitcnt vmcnt(0)')
        (ffn_compute if role == 'ffn' else att_compute)(P, lambda P, n: ts(P, 'c0'), None if o['nocs'] else (extra_ffn if role == 'ffn' else extra_att), True)
        ts(P, 'main')
        if role == 'ffn':
            ffn_epilogue2(P, o['st_aux'], o['defer'])
        else:
            att_epilogue2(P, o['st_aux'])
        ts(P, 'epi')
        if role == 'ffn':
            P.I('s_branch L_cflag')
    P.I('L_cflag:')
    flag_offset(P, 62)
    P.I('s_waitcnt vmcnt(0)')
    flag_store(P, 1)
    if o['w2early'] < p2.RING:
        P.I('s_barrier')
    ts(P, 'flag')
    P.I('L_cp2:')
    p2_decode(P)
    srd(P, SRD_OUT, 50, 2048 * 1024)
    p2_w_setup(P)
    p2_b_setup(P)
    p2_x_setup(P)
    P.I('s_barrier')
    ts(P, 'p2go')
    p2_main(P, aux=o['ld_aux'], pre_w=p2.RING)
    ts(P, 'p2main')
    p2_tail(P, o['out_aux'])
    P.I('s_branch L_fin')
    P.new_path()
    P.I('L_cidle:')
    P.I('s_waitcnt vmcnt(0)\ns_barrier\ns_branch L_cp2')
    P.new_path()
    P.I('L_loader:')
    p0_loads(P)
    if o['w2ft']:
        w2_first_touch(P)
    if o['w1ft']:
        w1_first_touch(P)
    srd(P, SRD_DBG, 52, 256)
    P.I('s_bitcmp1_b32 s59, 7\ns_cbranch_scc1 L_lidle')
    flag_offset(P, 62)
    flag_store(P, 0)
    P.I('s_cmp_lt_u32 s58, 8\ns_cbranch_scc1 L_latt')
    for role in ('ffn', 'att'):
        if role == 'att':
            P.new_path()
            P.I('L_latt:')
            P.I('s_nop 0')
            srd(P, SRD_WA, 38, 512 * 3072)
        else:
            srd(P, SRD_WA, 44, 512 * 2752)
            srd(P, SRD_WB, 46, 512 * 2752)
        x_dma_setup(P, role, 'raw')
        w_dma_setup(P, role)
        if o['rot']:
            P.I('s_bfe_u32 s%d, s59, 0x3000d' % S_KC)
        rot_init(P, role, 'raw', o['rot'])
        ts(P, 'setup')
        nd = n_dma(role)

        def after_init(P, role=role, nd=nd):
            ts(P, 'issued')
            if role == 'att':
                P.I('s_waitcnt vmcnt(%d)' % nd)
            p0_stats(P)

        def prebar(P, c, role=role):
            if c == 1:
                P.I('s_nop 0')
            if c == o['cs'] + 1:
                ts(P, 'cw0')
                counter_wait(P, role)
                ts(P, 'cw1')
            if c == o['cs'] + 2:
                stats_to_lds(P)

        def hook(P, c):
            if c == 1:
                arrive(P)
            if c == o['cs']:
                counter_load(P)
            if c == o['cs'] + 1:
                stats_load(P)

        def post(P, c):
            if c == 6 and o['w2pf']:
                w2_l2_prefetch(P)
        loader_main(P, role, False, o['split'], None, after_init=after_init, hook=hook, prebar=prebar, post=post)
        if role == 'ffn':
            P.I('s_branch L_lw2')
    P.I('L_lw2:')
    p2_decode(P)
    p2_w_setup(P)
    P.I('s_barrier')
    for i in range(o['w2early']):
        P.I('\n'.join(flat(p2_w_dma(i))))
    if o['w2early'] < p2.RING:
        P.I('s_barrier')
    P.I('L_lw2b:')
    for i in range(o['w2early'], p2.RING):
        P.I('\n'.join(flat(p2_w_dma(i))))
    ts(P, 'w2iss')
    P.I('s_cmp_lg_u32 s56, 0\ns_cbranch_scc1 L_lwait')
    P.cond_begin()
    flags_poll(P)
    ts(P, 'polled')
    P.cond_end()
    P.I('L_lwait:')
    P.I('s_waitcnt vmcnt(0)\ns_barrier')
    P.I('s_branch L_fin')
    P.new_path()
    P.I('L_lidle:')
    P.I('s_waitcnt vmcnt(0)')
    p0_stats(P)
    P.I('s_waitcnt vmcnt(0)\ns_barrier')
    arrive(P)
    counter_load(P)
    counter_wait(P, 'idle')
    p2_decode(P)
    p2_w_setup(P)
    for i in range(o['w2early']):
        P.I('\n'.join(flat(p2_w_dma(i))))
    P.I('s_branch L_lw2b')
    P.new_path()
    P.I('L_fin:')
    ts.dump(P)
    P.I('L_end:\ns_endpgm')
    body = P.finalize() + table_text() + 'L_code_end:\n'
    txt = HEADER + '; @launch grid=(256,1,1) block=(512,1,1) lds=%d\n' % LDS_BYTES
    txt += '.amdgcn_target "amdgcn-amd-amdhsa--gfx950"\n.text\n' + head(kn) + body + kd(kn, 256, 256)
    return txt


if __name__ == '__main__':
    out = sys.argv[1] if len(sys.argv) > 1 else 'f0.s'
    open(out, 'w').write(build())
    print('wrote', out)
```

```python
from fz import *
import p2, p2b

V_XB = 10
V_WQ = 9
L_RDY = 153600 + 2048
LDS_H = L_RDY + 64


def lane_patterns(P):
    P.I('''v_lshrrev_b32 v11, 3, v1
v_lshrrev_b32 v13, 4, v1
v_and_b32 v12, 7, v1
v_xor_b32 v14, v12, v13
v_lshlrev_b32 v14, 4, v14
v_lshl_add_u32 v%d, v11, 10, v14
v_lshrrev_b32 v14, 2, v11
v_and_b32 v11, 3, v11
v_lshl_add_u32 v11, v14, 3, v11
v_mul_u32_u24 v11, %d, v11
v_lshlrev_b32 v13, 1, v13
v_xor_b32 v12, v12, v13
v_lshl_add_u32 v%d, v12, 4, v11''' % (V_XB, PITCH_Q, V_WQ))
    for b in range(3):
        P.I('''v_add_u32 v11, %d, v1
v_mul_u32_u24 v12, 0x5556, v11
v_lshrrev_b32 v12, 18, v12
v_mul_u32_u24 v13, 12, v12
v_sub_u32 v13, v11, v13
v_bfe_u32 v14, v12, 2, 1
v_lshlrev_b32 v15, 1, v14
v_xor_b32 v13, v13, v15
v_bfe_u32 v15, v12, 3, 1
v_and_b32 v12, 3, v12
v_lshl_add_u32 v12, v14, 3, v12
v_lshl_add_u32 v12, v15, 2, v12
v_mul_u32_u24 v12, %d, v12
v_lshl_add_u32 v12, v13, 4, v12
v_subrev_u32 v%d, %d, v12''' % (64 * b, PITCH_F, V_WD0 + b, 1024 * b))


def w_setup(P, role):
    P.I('s_bitcmp1_b32 s57, 0')
    if role == 'ffn':
        P.I('s_cselect_b32 s8, s46, s44\ns_cselect_b32 s9, s47, s45\ns_cselect_b32 s12, s44, s46\ns_cselect_b32 s13, s45, s47')
        P.I('s_mov_b32 s10, 0x158000\ns_mov_b32 s11, 0x20000\ns_mov_b32 s14, 0x158000\ns_mov_b32 s15, 0x20000')
        P.I('''s_cselect_b32 s60, 0x3000, 0
s_mul_i32 s61, s56, 3072
s_add_u32 s61, s61, 24576
s_add_u32 s%d, s61, s60
s_xor_b32 s60, s60, 0x3000
s_add_u32 s%d, s61, s60
s_sub_u32 s60, s58, 8
s_mul_i32 s60, s60, 192
s_mul_i32 s61, s56, %d
s_add_u32 s%d, s60, s61''' % (S_M0W, S_M0W2, 16 * PITCH_F, S_WOFF))
    else:
        P.I('''s_cselect_b32 s62, %d, 0
s_cselect_b32 s60, 0xc00, 0
v_add_u32 v4, s62, v%d
s_mov_b32 s8, s38
s_mov_b32 s9, s39
s_mov_b32 s10, 0x180000
s_mov_b32 s11, 0x20000
s_mul_i32 s61, s56, 6144
s_add_u32 s61, s61, 26624
s_add_u32 s%d, s61, s60
s_xor_b32 s60, s60, 0xc00
s_add_u32 s%d, s61, s60
s_xor_b32 s62, s62, %d
v_add_u32 v5, s62, v%d
s_lshl_b32 s60, s58, 7
s_mul_i32 s61, s56, %d
s_add_u32 s%d, s60, s61''' % (4 * PITCH_Q, V_WQ, S_M0W, S_M0W2, 4 * PITCH_Q, V_WQ, 16 * PITCH_Q, S_WOFF))


def rot_w(P, role):
    if AUX.get('rot'):
        P.I('s_bfe_u32 s75, s59, 0x3000d\ns_mul_i32 s60, s75, %d\ns_add_u32 s%d, s%d, s60' % (64 * (PITCH_F if role == 'ffn' else PITCH_Q), S_WOFF, S_WOFF))


def rot_x(P):
    if AUX.get('rot'):
        P.I('s_bfe_u32 s75, s59, 0x3000d\ns_lshl_b32 s60, s75, 7')
        for r in (2, 3, 7, 8):
            P.I('v_add_u32 v%d, s60, v%d' % (r, r))


def x_setup(P, role):
    P.I('s_sub_u32 s24, s36, 4096\ns_subb_u32 s25, s37, 0\ns_mov_b32 s26, 0x%x\ns_mov_b32 s27, 0x20000' % (2048 * 1024 + 4096))
    n, half = (6, 3) if role == 'ffn' else (7, 4)
    if role == 'ffn':
        P.I('s_mul_i32 s60, s56, 6')
    else:
        P.I('s_mul_i32 s60, s56, 7\ns_min_u32 s60, s60, 19')
    P.I('s_bitcmp1_b32 s58, 0\ns_cselect_b32 s61, %d, 0\ns_cselect_b32 s62, 0, 3' % half)
    P.I('s_add_u32 s61, s61, s60\ns_add_u32 s62, s62, s60')
    P.I('s_lshl_b32 s%d, s61, 10\ns_lshl_b32 s%d, s62, 10' % (S_M0X, S_M0X2))
    P.I('''s_and_b32 s63, s61, 1
s_lshl_b32 s63, s63, 6
v_xor_b32 v2, s63, v%d
v_xor_b32 v3, 64, v2
s_and_b32 s63, s62, 1
s_lshl_b32 s63, s63, 6
v_xor_b32 v7, s63, v%d
v_xor_b32 v8, 64, v7''' % (V_XB, V_XB))
    P.I('s_mul_i32 s63, s57, 192')
    if role == 'att':
        P.I('s_sub_u32 s63, s63, 16')
    P.I('s_lshl_b32 s61, s61, 3\ns_lshl_b32 s62, s62, 3\ns_add_u32 s61, s61, s63\ns_add_u32 s62, s62, s63')
    for q in range(n):
        g, i = (61, q) if q < 3 else (62, q - 3)
        if role == 'att' and i < 2:
            P.I('s_add_u32 s60, s%d, %d\ns_max_i32 s60, s60, 0\ns_lshl_b32 s60, s60, 10\ns_add_u32 s%d, s60, %d' % (g, 8 * i, S_XO + q, 4096 - 1024 * i))
        elif i == 0 or (role == 'att' and i == 2):
            P.I('s_lshl_b32 s%d, s%d, 10\ns_add_u32 s%d, s%d, %d' % (S_XO + q, g, S_XO + q, S_XO + q, 4096 + 7168 * i))
        else:
            P.I('s_add_u32 s%d, s%d, 7168' % (S_XO + q, S_XO + q - 1))


def pieces(role, c):
    g, adv = alt_list(role, c)
    return g, adv


def issue(P, role, c, lo, hi):
    g, adv = pieces(role, c)
    n = len(g)
    seq, m0 = [], None
    for i, grp in enumerate(g):
        for x in grp:
            if x.startswith('s_add_u32 m0'):
                m0 = x
        if i == lo and lo > 0 and not grp[0].startswith('s_add_u32 m0'):
            seq.append(m0)
        if lo <= i < hi:
            seq += [x + ' ;@def C%d' % c if 'buffer_load' in x else x for x in grp]
    if hi >= n and c < 7:
        seq += adv
    P.I('\n'.join(seq))


def aux_setup(P):
    srd(P, SRD_X, 36, 2048 * 1024)
    srd_off(P, SRD_AUX, 54, STATS_OFF, 0x200000)
    srd(P, SRD_DBG, 52, 256)


def ready_clear(P):
    P.I('v_mov_b32 v26, %d\nv_mov_b32 v27, 0\nds_write_b32 v26, v27 offset:0\nds_write_b32 v26, v27 offset:4\nds_write_b32 v26, v27 offset:8\nds_write_b32 v26, v27 offset:12\ns_waitcnt lgkmcnt(0)' % L_RDY)


def loader_poll(P, spin_max):
    P.I('''s_mul_i32 s60, s%d, 21846
s_lshr_b32 s60, s60, 16
s_mul_i32 s60, s60, 23
s_mul_i32 s61, s56, 5
s_add_u32 s61, s61, 2
s_cmp_eq_u32 s56, 0
s_cselect_b32 s61, 0, s61
s_cselect_b32 s62, 7, 5
s_add_u32 s60, s60, s61
s_lshl_b32 s60, s60, 7
s_add_u32 s70, s60, 0x%x
v_min_u32 v11, s62, v1
v_lshlrev_b32 v11, 7, v11
s_mov_b32 s61, 0''' % (p2.S_TB2, FLAGS_OFF - STATS_OFF))
    P.I('L_fspin:')
    P.I('buffer_load_dwordx4 v[48:51], v11, s[28:31], s70 offen sc1\ns_add_u32 s61, s61, 1\ns_waitcnt vmcnt(0)')
    P.I('v_and_b32 v48, v48, v49\nv_and_b32 v50, v50, v51\nv_and_b32 v48, v48, v50\nv_cmp_ne_u32 vcc, 1, v48')
    P.I('s_cmp_ge_u32 s61, %d\ns_cbranch_scc1 L_fok\ns_nop 2\ns_cbranch_vccz L_fok\ns_branch L_fspin' % spin_max)
    P.I('L_fok:')
    P.I('s_lshl_b32 s60, s56, 2\ns_add_u32 s60, s60, %d\nv_mov_b32 v26, s60\nv_mov_b32 v27, 1\nds_write_b32 v26, v27\ns_waitcnt lgkmcnt(0)' % L_RDY)


def ready_wait(P, spin_max):
    P.I('s_lshl_b32 s60, s56, 2\ns_add_u32 s60, s60, %d\nv_mov_b32 v11, s60\ns_mov_b32 s61, 0' % L_RDY)
    P.I('L_rspin:')
    P.I('ds_read_b32 v12, v11\ns_add_u32 s61, s61, 1\ns_waitcnt lgkmcnt(0)\nv_cmp_ne_u32 vcc, 1, v12')
    P.I('s_cmp_ge_u32 s61, %d\ns_cbranch_scc1 L_rok\ns_nop 2\ns_cbranch_vccz L_rok\ns_branch L_rspin' % (spin_max * 16))
    P.I('L_rok:')
```

```python
from ld import *

NONCE_OFF = 0x180000
L_ST = 153600 + 2048 + 32
L_TAG = 153600 + 2048 + 16
S_TAG = 3
L_PR = 155776 + 4096
S_TK = 82


def stats_compute(P, X, F):
    S, Q, T = [30, 31], [32, 33], [34, 35]
    for i in range(2):
        for d in range(4):
            P.I('v_lshlrev_b32 v%d, 16, v%d\nv_and_b32 v%d, 0xffff0000, v%d' % (F[i] + 2 * d, X[i] + d, F[i] + 2 * d + 1, X[i] + d))
        P.I('v_add_f32 v%d, v%d, v%d' % (S[i], F[i], F[i] + 1))
        for d in range(2, 8):
            P.I('v_add_f32 v%d, v%d, v%d' % (S[i], S[i], F[i] + d))
    wave_sum(P, S, T)
    for i in range(2):
        P.I('v_mul_f32 v%d, 0x3b000000, v%d' % (S[i], S[i]))
    for d in range(8):
        for i in range(2):
            P.I('v_sub_f32 v%d, v%d, v%d' % (T[i], F[i] + d, S[i]))
        for i in range(2):
            P.I(('v_mul_f32 v%d, v%d, v%d' if d == 0 else 'v_fmac_f32 v%d, v%d, v%d') % (Q[i], T[i], T[i]))
    wave_sum(P, Q, T)
    steps = ['v_mul_f32 v%(q)d, 0x3b000000, v%(q)d', 'v_cvt_pk_bf16_f32 v%(q)d, v%(q)d, v%(q)d', 'v_lshlrev_b32 v%(q)d, 16, v%(q)d',
             'v_add_f32 v%%(q)d, %s, v%%(q)d' % fbits(1e-5), 'v_cvt_pk_bf16_f32 v%(q)d, v%(q)d, v%(q)d', 'v_lshlrev_b32 v%(q)d, 16, v%(q)d',
             'v_sqrt_f32 v%(q)d, v%(q)d', 'v_nop', 'v_cvt_pk_bf16_f32 v%(s)d, v%(s)d, v%(q)d']
    for st in steps:
        for i in range(2):
            P.I(st % dict(q=Q[i], s=S[i]))
    P.I('s_lshl_b32 s60, s56, 3\ns_add_u32 s60, s60, %d\nv_mov_b32 v34, s60\nds_write_b64 v34, v[30:31]\ns_waitcnt lgkmcnt(0)' % L_ST)


def x_rows(P):
    P.I('''s_lshl_b32 s60, s2, 2
s_add_u32 s60, s60, s56
s_lshl_b32 s60, s60, 11
v_lshlrev_b32 v14, 4, v1
buffer_load_dwordx4 v[40:43], v14, s[4:7], s60 offen
buffer_load_dwordx4 v[44:47], v14, s[4:7], s60 offen offset:1024''')


def publish_tag(P):
    P.I('v_mov_b32 v25, 0\ns_mov_b32 s60, 0x%x\ns_mov_b64 exec, 1' % (NONCE_OFF - STATS_OFF))
    P.I('buffer_load_dword v24, v25, s[28:31], s60 offen sc0 sc1')
    P.I('v_add_u32 v24, 0x9e3779b9, v24\nv_max_u32 v24, 1, v24')
    P.I('buffer_store_dword v24, v25, s[32:35], 0 offen sc0 sc1')
    P.I('buffer_store_dword v24, v25, s[28:31], s60 offen sc0 sc1')
    P.I('s_mov_b64 exec, -1')


def tag_load(P):
    P.I('s_cmp_eq_u32 s56, 0\ns_cselect_b32 s72, 0, 0x%x\nv_mov_b32 v26, 0' % HUGE)
    P.I('buffer_load_dword v27, v26, s[32:35], s72 offen sc1')


def tag_wait(P, tag):
    P.I('s_cmp_lg_u32 s56, 0\ns_cbranch_scc1 L_tok%s' % tag)
    P.cond_begin()
    P.I('v_readfirstlane_b32 s%d, v27\ns_mov_b32 s61, 0\ns_nop 1\ns_cmp_lg_u32 s%d, 0\ns_cbranch_scc1 L_tgot%s' % (S_TAG, S_TAG, tag))
    P.I('L_tspin%s:' % tag)
    P.I('s_sleep 2\nbuffer_load_dword v27, v26, s[32:35], 0 offen sc1\ns_add_u32 s61, s61, 1\ns_waitcnt vmcnt(0)')
    P.I('v_readfirstlane_b32 s%d, v27\ns_cmp_ge_u32 s61, %d\ns_cbranch_scc1 L_tgot%s\ns_cmp_eq_u32 s%d, 0\ns_cbranch_scc1 L_tspin%s' % (S_TAG, SPIN_MAX, tag, S_TAG, tag))
    P.I('L_tgot%s:' % tag)
    P.I('v_mov_b32 v26, %d\nv_mov_b32 v27, s%d\nds_write_b32 v26, v27\ns_waitcnt lgkmcnt(0)' % (L_TAG, S_TAG))
    P.cond_end()
    P.I('L_tok%s:' % tag)


def stats_publish(P, tag):
    P.I('s_cmp_lg_u32 s56, 0\ns_cbranch_scc1 L_pub%s' % tag)
    P.cond_begin()
    P.I('v_lshlrev_b32 v26, 2, v1\nv_add_u32 v26, %d, v26\ns_mov_b64 exec, 0xff\nds_read_b32 v28, v26' % L_ST)
    P.I('v_mov_b32 v29, s%d\nv_lshlrev_b32 v26, 3, v1\ns_lshl_b32 s60, s2, 6\ns_waitcnt lgkmcnt(0)' % S_TAG)
    P.I('buffer_store_dwordx2 v[28:29], v26, s[28:31], s60 offen sc0 sc1\ns_mov_b64 exec, -1')
    P.cond_end()
    P.I('L_pub%s:' % tag)


def stats_fetch(P, tag):
    P.I('s_cmp_lg_u32 s56, 0\ns_cbranch_scc1 L_sf%s' % tag)
    P.cond_begin()
    P.I('''s_mul_i32 s60, s57, 192
s_sub_u32 s60, s60, 16
v_lshl_add_u32 v26, v1, 2, s60
v_max_i32 v26, 0, v26
v_min_u32 v26, 0x7fc, v26
v_lshlrev_b32 v26, 3, v26
buffer_load_dwordx4 v[28:31], v26, s[28:31], 0 offen sc1
buffer_load_dwordx4 v[32:35], v26, s[28:31], 0 offen offset:16 sc1''')
    P.cond_end()
    P.I('L_sf%s:' % tag)


def stats_check(P, tag):
    P.I('s_cmp_lg_u32 s56, 0\ns_cbranch_scc1 L_sc%s' % tag)
    P.cond_begin()
    P.I('s_mov_b32 s61, 0')
    P.I('L_sspin%s:' % tag)
    P.I('''v_xor_b32 v36, s%d, v29
v_xor_b32 v37, s%d, v31
v_xor_b32 v38, s%d, v33
v_xor_b32 v39, s%d, v35
v_or_b32 v36, v36, v37
v_or3_b32 v36, v36, v38, v39
v_cmp_ne_u32 vcc, 0, v36
s_add_u32 s61, s61, 1
s_cmp_ge_u32 s61, %d
s_cbranch_scc1 L_sok%s
s_nop 1
s_cbranch_vccz L_sok%s
s_sleep 2
buffer_load_dwordx4 v[28:31], v26, s[28:31], 0 offen sc1
buffer_load_dwordx4 v[32:35], v26, s[28:31], 0 offen offset:16 sc1
s_waitcnt vmcnt(0)
s_branch L_sspin%s''' % (S_TAG, S_TAG, S_TAG, S_TAG, SPIN_MAX, tag, tag, tag))
    P.I('L_sok%s:' % tag)
    for r, src in enumerate((28, 30, 32, 34)):
        P.I('v_and_b32 v%d, 0xffff0000, v%d\nv_lshlrev_b32 v%d, 16, v%d' % (40 + r, src, 36 + r, src))
    for r in range(4):
        P.I('v_rcp_f32 v%d, v%d\nv_xor_b32 v%d, 0x80000000, v%d' % (40 + r, 40 + r, 36 + r, 36 + r))
    P.I('v_lshlrev_b32 v26, 4, v1\nv_add_u32 v26, %d, v26\nds_write_b128 v26, v[36:39]\nds_write_b128 v26, v[40:43] offset:1024' % L_NM)
    for r in range(4):
        P.I('v_mov_b32 v%d, v%d\nv_mov_b32 v%d, v%d' % (52 + 2 * r, 36 + r, 53 + 2 * r, 40 + r))
    P.I('v_lshlrev_b32 v26, 5, v1\nv_add_u32 v26, %d, v26\nds_write_b128 v26, v[52:55]\nds_write_b128 v26, v[56:59] offset:16\ns_waitcnt lgkmcnt(0)' % L_PR)
    P.cond_end()
    P.I('L_sc%s:' % tag)


def tag_from_lds(P):
    P.I('v_mov_b32 v12, %d\nds_read_b32 v12, v12\ns_waitcnt lgkmcnt(0)\nv_readfirstlane_b32 s%d, v12' % (L_TAG, S_TAG))


def flag_set(P):
    P.I('v_mov_b32 v11, s%d\nv_mov_b32 v12, 0\ns_mov_b64 exec, 1' % S_TAG)
    P.I('buffer_store_dword v11, v12, s[28:31], s71 offen sc0 sc1')
    P.I('s_mov_b64 exec, -1')


def poll(P, spin_max, back=0):
    P.I('''s_mul_i32 s60, s%d, 21846
s_lshr_b32 s60, s60, 16
s_mul_i32 s60, s60, 23
s_mul_i32 s61, s56, 5
s_add_u32 s61, s61, 2
s_cmp_eq_u32 s56, 0
s_cselect_b32 s61, 0, s61
s_cselect_b32 s62, 7, 5
s_add_u32 s60, s60, s61
s_lshl_b32 s60, s60, 7
s_add_u32 s63, s60, 0x%x
v_min_u32 v11, s62, v1
v_lshlrev_b32 v11, 7, v11
s_mov_b32 s61, 0''' % (p2.S_TB2, FLAGS_OFF - STATS_OFF))
    P.I('L_fspin:')
    P.I('buffer_load_dwordx4 v[48:51], v11, s[28:31], s63 offen sc1\ns_add_u32 s61, s61, 1\ns_waitcnt vmcnt(0)')
    P.I('''v_xor_b32 v48, s%d, v48
v_xor_b32 v49, s%d, v49
v_xor_b32 v50, s%d, v50
v_xor_b32 v51, s%d, v51
v_or_b32 v48, v48, v49
v_or3_b32 v48, v48, v50, v51
v_cmp_ne_u32 vcc, 0, v48''' % ((S_TAG,) * 4))
    P.I('s_cmp_ge_u32 s61, %d\ns_cbranch_scc1 L_fok\ns_nop 2\ns_cbranch_vccz L_fok\n%ss_branch L_fspin' % (spin_max, 's_sleep %d\n' % back if back else ''))
    P.I('L_fok:')


def w_touch_setup(P, k0, nk):
    per = -(-4288 // (255 // nk))
    pw = -(-per // 4)
    magic = -(-65536 // nk)
    assert all((d * magic) >> 16 == d // nk for d in range(256)) and pw <= 64
    P.I('''s_mul_i32 s60, s2, %d
s_lshr_b32 s60, s60, 16
s_mul_i32 s61, s60, %d
s_sub_u32 s61, s2, s61
s_add_u32 s%d, s61, %d
s_lshl_b32 s60, s60, 2
s_add_u32 s60, s60, s56
s_mul_i32 s60, s60, %d
v_add_u32 v44, s60, v1
v_cmp_gt_u32 vcc, %d, v1
v_mov_b32 v47, 0x%x
v_cndmask_b32 v44, v47, v44, vcc
v_subrev_u32 v45, 1536, v44
v_subrev_u32 v46, %d, v44
v_cmp_gt_u32 vcc, 1536, v44
v_lshlrev_b32 v44, 7, v44
v_cndmask_b32 v44, v47, v44, vcc
v_cmp_gt_u32 vcc, 1376, v45
v_lshlrev_b32 v45, 7, v45
v_cndmask_b32 v45, v47, v45, vcc
v_cmp_gt_u32 vcc, 1376, v46
v_lshlrev_b32 v46, 7, v46
v_cndmask_b32 v46, v47, v46, vcc''' % (magic, nk, S_TK, k0, pw, pw, HUGE, 1536 + 1376))


def w_touch(P, k, aux=''):
    P.I('s_cmp_eq_u32 s%d, %d\ns_cselect_b32 s62, %d, 0x%x' % (S_TK, k, 0, HUGE))
    P.I('s_add_u32 s60, s62, %d\ns_add_u32 s61, s62, %d' % (k * 64 * PITCH_Q, k * 64 * PITCH_F))
    srd(P, 20, 38, 0x180000)
    P.I('buffer_load_dword v48, v44, s[20:23], s60 offen %s' % aux)
    srd(P, 20, 44, 0x158000)
    P.I('buffer_load_dword v48, v45, s[20:23], s61 offen %s' % aux)
    srd(P, 20, 46, 0x158000)
    P.I('buffer_load_dword v48, v46, s[20:23], s61 offen %s' % aux)
```

```python
from p1 import *
import duty

S_TAB = 59
S_PXO, S_PWO = 77, 78
SRD_PF = 20
V_PX, V_PW = 7, 8
V_DUM = 9
HUGE = 0x7f000000


def table_load(P):
    P.I('s_getpc_b64 s[84:85]')
    P.I('L_pfpc:')
    P.I('s_lshl_b32 s60, s2, 2\ns_add_u32 s60, s60, L_table-L_pfpc\ns_load_dword s%d, s[84:85], s60' % S_TAB)


def table_decode(P):
    P.I('s_and_b32 s57, s%d, 15\ns_bfe_u32 s58, s%d, 0x50008' % (S_TAB, S_TAB))


def table_text():
    t = duty.table()
    return 'L_table:\n' + ''.join('.long %s\n' % ', '.join('0x%08x' % x for x in t[i:i + 8]) for i in range(0, 256, 8))


def wave_split(P):
    P.I('v_lshrrev_b32 v11, 6, v0\nv_and_b32 v1, 63, v0\nv_readfirstlane_b32 s79, v11\ns_and_b32 s56, s79, 3')


def code_prefetch2(P, dst):
    P.I('s_lshr_b32 s60, s2, 3\ns_lshl_b32 s60, s60, 3\ns_add_u32 s60, s60, s79\ns_lshl_b32 s60, s60, 8\nv_lshl_add_u32 v11, v1, 2, s60')
    P.I('v_min_u32 v11, L_code_end-L_pfpc-4, v11')
    P.I('global_load_dword v%d, v11, s[84:85]' % dst)


def pf_setup(P, role):
    P.I('''s_bitcmp1_b32 s%d, 4
s_cselect_b32 s60, 52, 48
s_cselect_b32 s61, 16, 0
s_mul_i32 s62, s56, s60
s_mul_i32 s63, s57, 192
s_add_u32 s62, s62, s63
s_sub_u32 s62, s62, s61
v_add_u32 v11, s62, v1
v_max_i32 v11, 0, v11
v_lshlrev_b32 v11, 10, v11
v_cmp_gt_u32 vcc, s60, v1
v_mov_b32 v12, 0x%x
v_cndmask_b32 v%d, v12, v11, vcc''' % (S_TAB, HUGE, V_PX))
    if role == 'ffn':
        P.I('s_cmp_lt_u32 s56, 2\ns_cselect_b32 s20, s44, s46\ns_cselect_b32 s21, s45, s47\ns_mov_b32 s22, 0x158000\ns_mov_b32 s23, 0x20000')
        P.I('''s_and_b32 s60, s56, 1
s_mul_i32 s60, s60, %d
s_sub_u32 s61, s58, 8
s_mul_i32 s61, s61, 192
s_add_u32 s60, s60, s61
s_mov_b32 s61, %d
v_lshrrev_b32 v11, 1, v1
v_mul_u32_u24 v11, s61, v11
v_and_b32 v12, 1, v1
v_lshl_add_u32 v11, v12, 7, v11
v_add_u32 v%d, s60, v11''' % (32 * PITCH_F, PITCH_F, V_PW))
    else:
        P.I('s_mov_b32 s20, s38\ns_mov_b32 s21, s39\ns_mov_b32 s22, 0x180000\ns_mov_b32 s23, 0x20000')
        P.I('''s_mul_i32 s60, s56, %d
s_lshl_b32 s61, s58, 7
s_add_u32 s60, s60, s61
s_mov_b32 s61, %d
v_and_b32 v11, 15, v1
v_mul_u32_u24 v11, s61, v11
v_lshrrev_b32 v12, 4, v1
v_lshl_add_u32 v11, v12, 10, v11
v_add_u32 v11, s60, v11
v_cmp_gt_u32 vcc, 48, v1
v_mov_b32 v12, 0x%x
v_cndmask_b32 v%d, v12, v11, vcc''' % (16 * PITCH_Q, PITCH_Q, HUGE, V_PW))


def pf_duty(role, k, aux=''):
    pitch = PITCH_F if role == 'ffn' else PITCH_Q
    return ['s_bitcmp1_b32 s%d, %d' % (S_TAB, 16 + k),
            's_mov_b32 s60, 0x%x' % HUGE,
            's_cselect_b32 s60, %d, s60' % (128 * k),
            'buffer_load_dword v%d, v%d, s[4:7], s60 offen %s' % (V_DUM, V_PX, aux),
            's_bitcmp1_b32 s%d, %d' % (S_TAB, 24 + k),
            's_mov_b32 s60, 0x%x' % HUGE,
            's_cselect_b32 s60, %d, s60' % (64 * pitch * k),
            'buffer_load_dword v%d, v%d, s[20:23], s60 offen %s' % (V_DUM, V_PW, aux)]


AUX = {'x': '', 'w': ''}
SRD_XD = 24
S_M0X2, S_M0W2 = 77, 78
V_XD2, V_XD3 = 7, 8


def alt_setup(P, role, ptr_x=36):
    P.I('s_sub_u32 s24, s%d, 4096\ns_subb_u32 s25, s%d, 0\ns_mov_b32 s26, 0x%x\ns_mov_b32 s27, 0x20000' % (ptr_x, ptr_x + 1, 2048 * 1024 + 4096))
    n, half = (6, 3) if role == 'ffn' else (7, 4)
    if role == 'ffn':
        P.I('s_mul_i32 s60, s56, 6')
    else:
        P.I('s_mul_i32 s60, s56, 7\ns_min_u32 s60, s60, 19')
    P.I('s_bitcmp1_b32 s58, 0\ns_cselect_b32 s61, %d, 0\ns_cselect_b32 s62, 0, 3' % half)
    P.I('s_add_u32 s61, s61, s60\ns_add_u32 s62, s62, s60')
    P.I('s_lshl_b32 s%d, s61, 10\ns_lshl_b32 s%d, s62, 10' % (S_M0X, S_M0X2))
    P.I('''v_lshrrev_b32 v11, 3, v1
v_lshlrev_b32 v11, 10, v11
v_and_b32 v12, 7, v1
v_lshrrev_b32 v13, 4, v1
v_xor_b32 v12, v12, v13
v_lshl_add_u32 v11, v12, 4, v11
s_and_b32 s63, s61, 1
s_lshl_b32 s63, s63, 6
v_xor_b32 v2, s63, v11
v_xor_b32 v3, 64, v2
s_and_b32 s63, s62, 1
s_lshl_b32 s63, s63, 6
v_xor_b32 v7, s63, v11
v_xor_b32 v8, 64, v7''')
    P.I('s_mul_i32 s63, s57, 192')
    if role == 'att':
        P.I('s_sub_u32 s63, s63, 16')
    P.I('s_lshl_b32 s61, s61, 3\ns_lshl_b32 s62, s62, 3\ns_add_u32 s61, s61, s63\ns_add_u32 s62, s62, s63')
    for q in range(n):
        g, i = (61, q) if q < 3 else (62, q - 3)
        P.I('s_add_u32 s60, s%d, %d' % (g, 8 * i))
        if role == 'att' and i < 2:
            P.I('s_max_i32 s60, s60, 0')
        P.I('s_lshl_b32 s60, s60, 10\ns_add_u32 s%d, s60, %d' % (S_XO + q, 4096 - 1024 * i))
    P.I('s_bitcmp1_b32 s57, 0')
    if role == 'ffn':
        P.I('s_cselect_b32 s8, s46, s44\ns_cselect_b32 s9, s47, s45\ns_cselect_b32 s12, s44, s46\ns_cselect_b32 s13, s45, s47')
        P.I('s_mov_b32 s10, 0x158000\ns_mov_b32 s11, 0x20000\ns_mov_b32 s14, 0x158000\ns_mov_b32 s15, 0x20000')
        P.I('s_cselect_b32 s60, 0x3000, 0\ns_sub_u32 s61, 0x3000, s60')
    else:
        P.I('s_cselect_b64 vcc, -1, 0\ns_cselect_b32 s60, 0xc00, 0\ns_sub_u32 s61, 0xc00, s60')
        P.I('v_cndmask_b32 v11, v4, v5, vcc\nv_cndmask_b32 v5, v5, v4, vcc\nv_mov_b32 v4, v11')
    P.I('s_add_u32 s%d, s%d, s61\ns_add_u32 s%d, s%d, s60' % (S_M0W2, S_M0W, S_M0W, S_M0W))


def alt_list(role, c):
    st = (c % NST) * STAGE
    n = 6 if role == 'ffn' else 7

    def wpart(h):
        out = []
        for b in range(3):
            g = []
            if b == 0:
                g.append('s_add_u32 m0, s%d, %d' % (S_M0W2 if h else S_M0W, st))
            if role == 'ffn':
                g.append('buffer_load_dwordx4 v%d, s[%d:%d], s%d offen offset:%d lds' % (V_WD0 + b, 8 + 4 * h, 11 + 4 * h, S_WOFF, 1024 * b))
            else:
                g.append('buffer_load_dwordx4 v%d, s[8:11], s%d offen offset:%d lds' % (V_WD0 + h, S_WOFF, 1024 * b))
            out.append(g)
        return out

    def xpart(h):
        out = []
        for q in (range(3) if h == 0 else range(3, n)):
            i = q - 3 * h
            g = []
            if i == 0:
                g.append('s_add_u32 m0, s%d, %d' % (S_M0X2 if h else S_M0X, st))
            g.append('buffer_load_dwordx4 v%d, s[24:27], s%d offen offset:%d lds' % ((V_XD2 if h else V_XD0) + (i & 1), S_XO + q, 1024 * i))
            out.append(g)
        return out
    if AUX.get('rot'):
        pitch = PITCH_F if role == 'ffn' else PITCH_Q
        adv = ['s_add_u32 s75, s75, 1', 's_and_b32 s75, s75, 7', 's_cmp_eq_u32 s75, 0', 's_cselect_b32 s76, -7, 1',
               's_mul_i32 s60, s76, %d' % (64 * pitch), 's_add_u32 s%d, s%d, s60' % (S_WOFF, S_WOFF), 's_lshl_b32 s76, s76, 7']
        adv += ['v_add_u32 v%d, s76, v%d' % (r, r) for r in (2, 3, 7, 8)]
    else:
        adv = chunk_advance(role, 'raw', None) + ['v_add_u32 v7, 128, v7', 'v_add_u32 v8, 128, v8']
    if AUX.get('alt') == 'wx':
        return wpart(0) + xpart(0) + wpart(1) + xpart(1), adv
    return xpart(0) + wpart(0) + xpart(1) + wpart(1), adv


def dma_list(role, c):
    if AUX.get('alt'):
        return alt_list(role, c)
    g = x_dma(role, 'raw', c % NST)
    w = w_dma(role, c % NST)
    g = [[x.replace(' lds', ' %s lds' % AUX['x']) for x in q] for q in g]
    w = [[x.replace(' lds', ' %s lds' % AUX['w']) for x in q] for q in w]
    return w + g, chunk_advance(role, 'raw', AUX.get('rot'))


def loader_main(P, role, pf=True, split=4, ts=None, early=None, after_init=None, hook=None, pf_lead=3, prebar=None, post=None):
    n = n_dma(role)

    def issue(c, lo, hi):
        g, adv = dma_list(role, c)
        seq = []
        m0 = None
        for i, grp in enumerate(g):
            for x in grp:
                if x.startswith('s_add_u32 m0'):
                    m0 = x
            if i == lo and lo > 0 and not grp[0].startswith('s_add_u32 m0'):
                seq.append(m0)
            if lo <= i < hi:
                seq += [x + ' ;@def C%d' % c if 'buffer_load' in x else x for x in grp]
        if hi == n and c < 7:
            seq += adv
        P.I('\n'.join(seq))
    if early:
        early(P)
    if pf:
        P.I('\n'.join(pf_duty(role, 0) + pf_duty(role, 1)))
    issue(0, 0, n)
    if after_init:
        after_init(P)
    issue(1, 0, split)
    if ts:
        ts(P, 'l_issued')
    for c in range(8):
        P.I('s_nop 0 ;@use C%d' % c)
        if prebar:
            prebar(P, c)
        if AUX.get('barts'):
            P.I('s_memtime s[80:81]\ns_waitcnt lgkmcnt(0)\ns_mov_b32 s%d, s80' % (86 + c))
        P.I('s_barrier')
        if ts and c == 0:
            ts(P, 'l_c0')
        if hook:
            hook(P, c)
        if c + 1 < 8:
            issue(c + 1, split, n)
        if c + 2 < 8:
            issue(c + 2, 0, split)
        if post:
            post(P, c)
        k = c + pf_lead
        if pf and 2 <= k < 8 and c >= 0:
            P.I('\n'.join(pf_duty(role, k)))
        if pf and c == 0:
            for k2 in range(2, pf_lead):
                P.I('\n'.join(pf_duty(role, k2)))


def hoist(fill, lo, hi, L):
    pos = lo
    cost = lambda x: 2 if x.startswith('ds_') else 1
    for n, x in enumerate(L):
        room = 2 * (hi - pos) - sum(len(fill.get(p, [])) for p in range(pos, hi))
        tight = len(L) - n >= room - 4
        while pos < hi - 1:
            cur = fill.get(pos, [])
            used = len(cur) if tight else sum(cost(y) for y in cur)
            if used + (1 if tight else cost(x)) <= 2:
                break
            pos += 1
        fill.setdefault(pos, []).append(x)


def bar_stamp(c):
    if AUX.get('barts') == 'arrive':
        return ['s_memtime s[80:81]', 's_waitcnt lgkmcnt(0)', 's_mov_b32 s%d, s80' % (86 + c)]
    return []


def bar_stamp2(c):
    if AUX.get('barts') == 'leave':
        return ['s_memtime s[80:81]', 's_waitcnt lgkmcnt(0)', 's_mov_b32 s%d, s80' % (86 + c)]
    return []


def ffn_compute(P, ts=None, extra=None, bar8=False, pre=None):
    P.I('s_barrier')
    if ts:
        ts(P, 'chunk0')
    for b in range(6):
        P.I(ffn_B_read(b, 0, 0))
    P.I('\n'.join(ffn_A_read(0, 0, 0) + ffn_A_read(1, 0, 1)))
    for c in range(8):
        mf, fill = [], {}
        for ks in range(2):
            kk = 2 * c + ks
            for a_ in range(6):
                n = 6 * kk + a_
                base = len(mf)
                for b in range(6):
                    mf.append(mfma(ffn_acc(a_, b), V_FR + 48 + 4 * (n % 3), V_FR + 24 * (kk % 2) + 4 * b, kk == 0))
                if extra:
                    mf += extra(kk, a_, V_FR + 48 + 4 * (n % 3))
                last_chunk = c == 7
                if ks == 1 and a_ == 4 and (bar8 or not last_chunk):
                    fill.setdefault(base - 1, []).extend(['s_waitcnt lgkmcnt(0)'] + bar_stamp(c + 1) + ['s_barrier'] + bar_stamp2(c + 1))
                n2 = n + 2
                if n2 < 96:
                    a2, ks2 = n2 % 6, (n2 // 6) % 2
                    r = ffn_A_read(a2, ks2, n2 % 3)
                    fill.setdefault(base, []).append(r[0])
                    fill.setdefault(base + 1, []).append(r[1])
                    if ks == 1 and a_ == 3 and not last_chunk:
                        sw = stage_switch('ffn', c)
                        fill.setdefault(base + 2, []).extend(sw[:2])
                        fill.setdefault(base + 3, []).extend(sw[2:])
                if kk < 15:
                    if ks == 0 and a_ < 3:
                        for t in range(2):
                            fill.setdefault(base + 2 + t, []).append(ffn_B_read(2 * a_ + t, 1, (kk + 1) % 2))
                    if ks == 1 and a_ >= 4:
                        for t in range(3):
                            fill.setdefault(base + 2 + t, []).append(ffn_B_read(3 * (a_ - 4) + t, 0, (kk + 1) % 2))
        if c == 7 and pre:
            hoist(fill, len(mf) // 2, len(mf), pre)
        P.I('\n'.join(interleave(mf, fill)))


def att_compute(P, ts=None, extra=None, bar8=False, pre=None):
    NXB, D = 5, 3
    P.I('s_barrier')
    if ts:
        ts(P, 'chunk0')
    P.I('\n'.join(att_W_read(1, 0, 0) + att_W_read(2, 0, 0)))
    for t in range(D):
        P.I(att_X_read(t, 0, t % NXB))
    P.I('\n'.join(att_W_read(0, 0, 0)))
    for c in range(8):
        mf, fill = [], {}
        for ks in range(2):
            kk = 2 * c + ks
            wb = V_FR + 12 * (kk % 2)
            for t in range(13):
                n = 13 * kk + t
                base = len(mf)
                xb = V_FR + 24 + 4 * (n % NXB)
                mf.append(mfma(att_acck(t), wb + 4, xb, kk == 0))
                mf.append(mfma(att_accv(t), wb + 8, xb, kk == 0, swap=True))
                if t >= 1:
                    mf.append(mfma(att_accq(t), wb, xb, kk == 0))
                if extra:
                    mf += extra(kk, t, wb)
                last_chunk = c == 7
                bar_t = 13 - D
                if ks == 1 and t == bar_t and (bar8 or not last_chunk):
                    fill.setdefault(base - 1, []).extend(['s_waitcnt lgkmcnt(0)'] + bar_stamp(c + 1) + ['s_barrier'] + bar_stamp2(c + 1))
                if ks == 1 and t == bar_t - 1 and not last_chunk:
                    sw = stage_switch('att', c)
                    fill.setdefault(base + 1, []).extend(sw[:2])
                    fill.setdefault(base + 2, []).extend(sw[2:])
                n2 = n + D
                if n2 < 13 * 16:
                    t2, ks2 = n2 % 13, (n2 // 13) % 2
                    fill.setdefault(base, []).append(att_X_read(t2, ks2, n2 % NXB))
                if kk < 15:
                    order = [1, 2, 0]
                    if ks == 0 and 1 <= t <= 6:
                        m = order[(t - 1) // 2]
                        fill.setdefault(base + 1, []).append(att_W_read(m, 1, (kk + 1) % 2)[(t - 1) % 2])
                    if ks == 1 and t >= bar_t:
                        m = order[t - bar_t]
                        r = att_W_read(m, 0, (kk + 1) % 2)
                        fill.setdefault(base + 1, []).append(r[0])
                        fill.setdefault(base + 2, []).append(r[1])
        if c == 7 and pre:
            hoist(fill, len(mf) // 2 + 1, len(mf), pre)
        P.I('\n'.join(interleave(mf, fill)))


def ffn_compute2(P, ts=None, extra=None, bar8=True, PD=3, pre_end=None):
    NA = PD + 1
    AB = lambda n: V_FR + 48 + 4 * (n % NA)

    def a_rd(n):
        aidx, ks = n % 6, (n // 6) % 2
        m, uu = aidx & 1, aidx >> 1
        reg = V_WB if uu == 1 else V_WA
        base = 24576 + m * 12288 + uu * 32 + 32 * ks * 192
        d = AB(n)
        return ['ds_read_b64_tr_b16 %s, v%d offset:%d' % (v(d, 2), reg, base),
                'ds_read_b64_tr_b16 %s, v%d offset:%d' % (v(d + 2, 2), reg, base + 8 * 192)]
    P.I('s_barrier')
    if ts:
        ts(P, 'chunk0')
    P.I('\n'.join(a_rd(0)))
    for b in range(6):
        P.I(ffn_B_read(b, 0, 0))
    for n in range(1, PD):
        P.I('\n'.join(a_rd(n)))
    bar_a = 6 - PD
    for c in range(8):
        mf, fill = [], {}
        for ks in range(2):
            kk = 2 * c + ks
            for a_ in range(6):
                n = 6 * kk + a_
                base = len(mf)
                for b in range(6):
                    mf.append(mfma(ffn_acc(a_, b), AB(n), V_FR + 24 * (kk % 2) + 4 * b, kk == 0))
                if extra:
                    mf += extra(kk, a_, AB(n))
                last_chunk = c == 7
                if ks == 1 and a_ == bar_a and (bar8 or not last_chunk):
                    fill.setdefault(base - 1, []).extend(['s_waitcnt lgkmcnt(0)'] + bar_stamp(c + 1) + ['s_barrier'] + bar_stamp2(c + 1))
                n2 = n + PD
                if n2 < 96:
                    r = a_rd(n2)
                    fill.setdefault(base, []).append(r[0])
                    fill.setdefault(base + 1, []).append(r[1])
                if ks == 1 and a_ == bar_a - 1 and not last_chunk:
                    sw = stage_switch('ffn', c)
                    fill.setdefault(base + 2, []).extend(sw[:2])
                    fill.setdefault(base + 3, []).extend(sw[2:])
                if kk < 15:
                    if ks == 0 and a_ < 3:
                        for t in range(2):
                            fill.setdefault(base + 2 + t, []).append(ffn_B_read(2 * a_ + t, 1, (kk + 1) % 2))
                    if ks == 1 and a_ >= bar_a:
                        per = 6 // PD
                        for t in range(per):
                            fill.setdefault(base + 2 + t, []).append(ffn_B_read(per * (a_ - bar_a) + t, 0, (kk + 1) % 2))
        if c == 7 and pre_end:
            pre_end(fill, len(mf))
        P.I('\n'.join(interleave(mf, fill)))
```

```python
from ep4 import *

L_CS = 155776
LDS_C = L_CS + 4 * 1024 + 2048
XA = [7, 8]
WAs, WBs = [9, 2], [10, 3]


def ffn_addr_extra(P):
    P.I('''s_lshr_b32 s60, s56, 1
s_lshl_b32 s61, s60, 6
s_mul_i32 s62, s60, 6144
s_lshl_b32 s63, s62, 1
s_sub_u32 s63, 6144, s63
v_xor_b32 v7, s61, v7
v_xor_b32 v8, 64, v7
v_add_u32 v9, s62, v9
v_add_u32 v10, s62, v10
v_add_u32 v2, s63, v9
v_add_u32 v3, s63, v10
v_lshrrev_b32 v11, 4, v1
v_lshlrev_b32 v11, 4, v11
s_lshl_b32 s60, s56, 10
s_add_u32 s60, s60, %d
v_and_b32 v6, 15, v1
v_lshl_add_u32 v4, v6, 6, v11
v_add_u32 v4, s60, v4
s_xor_b32 s60, s60, 0x800
v_add_u32 v5, s60, v11''' % L_CS)
    assert L_CS % 4096 < 1024 or True
    for a_ in range(1, 6):
        P.I('v_cmp_eq_u32 s[%d:%d], %d, v6' % (62 + 2 * a_, 63 + 2 * a_, a_))


def a_rd(n):
    aidx, s_ = n % 6, (n // 6) % 2
    m, uu = aidx & 1, aidx >> 1
    reg = (WBs if uu == 1 else WAs)[s_]
    base = 24576 + m * 12288 + uu * 32
    d = V_FR + 48 + 4 * (n % 3)
    return ['ds_read_b64_tr_b16 %s, v%d offset:%d' % (v(d, 2), reg, base),
            'ds_read_b64_tr_b16 %s, v%d offset:%d' % (v(d + 2, 2), reg, base + 8 * 192)]


def partner_read(a_, dst):
    return 'ds_read_b128 %s, v5 offset:%d' % (v(dst, 4), 64 * a_)


def ffn_compute3(P, ts, pre):
    P.I('s_barrier')
    if ts:
        ts(P, 'chunk0')
    for b in range(6):
        P.I(ffn_B_read(b, 0, 0))
    P.I('\n'.join(a_rd(0) + a_rd(1)))
    busy = {('v', r) for r in range(40, 64)}
    early = [x for x in pre if not ((Ins(x).defs | Ins(x).uses) & busy)]
    late = [x for x in pre if x not in early]
    for c in range(8):
        mf, fill, starts = [], {}, []
        for ks in range(2):
            kk = 2 * c + ks
            for a_ in range(6):
                n = 6 * kk + a_
                base = len(mf)
                starts.append(base)
                for b in range(6):
                    mf.append(mfma(ffn_acc(a_, b), V_FR + 48 + 4 * (n % 3), V_FR + 24 * (kk % 2) + 4 * b, kk == 0))
                if ks == 0:
                    mf += extra_ffn(kk, a_, V_FR + 48 + 4 * (n % 3))
                last_chunk = c == 7
                if ks == 1 and a_ == 4:
                    fill.setdefault(base - 1, []).extend(['s_waitcnt lgkmcnt(0)'] + bar_stamp(c + 1) + ['s_barrier'] + bar_stamp2(c + 1))
                n2 = n + 2
                if n2 < 96:
                    r = a_rd(n2)
                    fill.setdefault(base, []).append(r[0])
                    fill.setdefault(base + 1, []).append(r[1])
                    if ks == 1 and a_ == 3 and not last_chunk:
                        d = STAGE if (c + 1) % NST else -(NST - 1) * STAGE
                        sw = ['v_add_u32 v%d, %d, v%d' % (r_, d, r_) for r_ in XA + WAs + WBs]
                        for q in range(3):
                            fill.setdefault(base + 2 + q, []).extend(sw[2 * q:2 * q + 2])
                if kk < 15:
                    if ks == 0 and a_ < 3:
                        for t in range(2):
                            fill.setdefault(base + 2 + t, []).append(ffn_B_read(2 * a_ + t, 1, (kk + 1) % 2))
                    if ks == 1 and a_ >= 4:
                        for t in range(3):
                            fill.setdefault(base + 2 + t, []).append(ffn_B_read(3 * (a_ - 4) + t, 0, (kk + 1) % 2))
        if c == 7:
            hoist(fill, starts[3], starts[6], early)
            w = []
            for a_ in range(1, 6):
                w += ['v_cndmask_b32 v%d, v%d, v%d, s[%d:%d]' % (36 + r, (cs_ffn(0) if a_ == 1 else 36) + r, cs_ffn(a_) + r, 62 + 2 * a_, 63 + 2 * a_) for r in range(4)]
            w += ['ds_write_b128 v4, v[36:39]']
            late = [x for x in late if x.startswith('ds_read')] + w + [x for x in late if not x.startswith('ds_read')]
            b0 = starts[10]
            fill.setdefault(b0, []).extend([partner_read(0, 36), partner_read(1, 100)])
            fill.setdefault(b0 + 1, []).extend([partner_read(2, 88)])
            adds = ['v_add_f32 v%d, v%d, v%d' % (cs_ffn(0) + r, cs_ffn(0) + r, 36 + r) for r in range(4)] + ['v_add_f32 v%d, v%d, v%d' % (cs_ffn(1) + r, cs_ffn(1) + r, 100 + r) for r in range(4)]
            for q in range(4):
                fill.setdefault(b0 + 8 + q, []).extend(adds[2 * q:2 * q + 2])
            bar = fill.pop(b0 - 1)
            hoist(fill, starts[6] + 1, b0 + 8, late)
            assert any('ds_write' in x for p in range(b0) for x in fill.get(p, []))
            fill.setdefault(b0 - 1, []).extend(bar)
        P.I('\n'.join(interleave(mf, fill)))
    P.I('\n'.join([partner_read(3, 92), partner_read(4, 36), partner_read(5, 100)]))


def ffn_cs_rest(uu):
    if uu == 1:
        src = {2: 88, 3: 92}
    elif uu == 2:
        src = {4: 36, 5: 100}
    else:
        return []
    return [pk('v_pk_add_f32', cs_ffn(a_) + 2 * h, cs_ffn(a_) + 2 * h, r + 2 * h) for a_, r in src.items() for h in range(2)]


def att_compute3(P, ts, pre):
    NXB, D = 5, 3
    P.I('s_mov_b32 s72, 0x10001\ns_mov_b32 s73, 0x10001')
    patch = lambda xb: ['v_cndmask_b32 v%d, v%d, v%d, s[72:73]' % (xb + r, xb + r, V_ONES + r) for r in range(4)]
    P.I('s_barrier')
    if ts:
        ts(P, 'chunk0')
    P.I('\n'.join(att_W_read(1, 0, 0) + att_W_read(2, 0, 0)))
    for t in range(D):
        P.I(att_X_read(t, 0, t % NXB))
    P.I('\n'.join(att_W_read(0, 0, 0)))
    P.I('\n'.join(patch(V_FR + 24)))
    for c in range(8):
        mf, fill, starts = [], {}, []
        for ks in range(2):
            kk = 2 * c + ks
            wb = V_FR + 12 * (kk % 2)
            for t in range(13):
                n = 13 * kk + t
                base = len(mf)
                starts.append(base)
                xb = V_FR + 24 + 4 * (n % NXB)
                mf.append(mfma(att_acck(t), wb + 4, xb, kk == 0))
                mf.append(mfma(att_accv(t), wb + 8, xb, kk == 0, swap=True))
                mf.append(mfma(att_accq(t) if t else 20, wb, xb, kk == 0))
                last_chunk = c == 7
                bar_t = 13 - D
                if ks == 1 and t == bar_t:
                    fill.setdefault(base - 1, []).extend(['s_waitcnt lgkmcnt(0)'] + bar_stamp(c + 1) + ['s_barrier'] + bar_stamp2(c + 1))
                if ks == 1 and t == bar_t - 1 and not last_chunk:
                    sw = stage_switch('att', c)
                    fill.setdefault(base + 1, []).extend(sw[:2])
                    fill.setdefault(base + 2, []).extend(sw[2:])
                n2 = n + D
                if n2 < 13 * 16:
                    t2, ks2 = n2 % 13, (n2 // 13) % 2
                    fill.setdefault(base, []).append(att_X_read(t2, ks2, n2 % NXB))
                if t == 12 and kk < 15:
                    p = patch(V_FR + 24 + 4 * ((n + 1) % NXB))
                    fill.setdefault(base, []).extend(p[:1])
                    fill.setdefault(base + 1, []).extend(p[1:])
                if kk < 15:
                    order = [1, 2, 0]
                    if ks == 0 and 1 <= t <= 6:
                        m = order[(t - 1) // 2]
                        fill.setdefault(base + 1, []).append(att_W_read(m, 1, (kk + 1) % 2)[(t - 1) % 2])
                    if ks == 1 and t >= bar_t:
                        m = order[t - bar_t]
                        r = att_W_read(m, 0, (kk + 1) % 2)
                        fill.setdefault(base + 1, []).append(r[0])
                        fill.setdefault(base + 2, []).append(r[1])
        if c == 7:
            dp = ' row_newbcast:0 row_mask:0xf bank_mask:0xf'
            ex = ['v_mov_b32_dpp v%d, v%d%s' % (20 + r, 20 + r, dp) for r in range(4)]
            ex += ['v_mov_b32_dpp v%d, v%d%s' % (24 + r, att_acck(0) + r, dp) for r in range(4)]
            ex += ['v_mov_b32 v28, v%d' % att_accv(0), 'v_mov_b32 v29, v%d' % att_accv(0), 's_nop 0', 'v_permlane16_swap_b32 v28, v29',
                   'v_mov_b32 v29, v28', 's_nop 0', 's_nop 0', 'v_permlane32_swap_b32 v28, v29']
            hoist(fill, starts[13 + 1], starts[13 + 9], pre)
            hoist(fill, starts[13 + 9], len(mf), ex)
        P.I('\n'.join(interleave(mf, fill)))
```

```python
from p1e import TP
from p1 import *
import p2
from p2 import NKS, RING, WREG, S_TB2, S_CB2, S_WA, S_WB, S_M02, S_BO, S_BL, V2_WD, V2_WA, V2_B, V2_X, V2_RED, WA_REG, p2_w_setup, p2_w_dma

NPARK = 6
V_A = 16
V_B = 48
NB = 3
V_ACC2 = 128
PARK = [96, 112, 192, 208, 224, 240]
V_XR = 96
V_R1, V_R2, V_R3 = 11, 12, 13


def decode(P, mode):
    if mode == '4x8':
        p2.p2_decode(P)
    else:
        P.I('''s_and_b32 s60, s2, 6
s_lshl_b32 s60, s60, 2
s_lshr_b32 s61, s2, 5
s_add_u32 s%d, s60, s61
s_and_b32 s60, s2, 1
s_lshl_b32 s60, s60, 2
s_bfe_u32 s61, s2, 0x20003
s_add_u32 s%d, s60, s61''' % (S_TB2, S_CB2))


def a_src(i, c):
    return PARK[i] + 4 * c if i < NPARK else V_A + 16 * (i % 2) + 4 * c


def a_read(i, c):
    d = a_src(i, c)
    base = (i % RING) * 4096
    return ['ds_read_b64_tr_b16 %s, v%d offset:%d ;@use W%d' % (v(d, 2), WA_REG[c], base, i),
            'ds_read_b64_tr_b16 %s, v%d offset:%d ;@use W%d' % (v(d + 2, 2), WA_REG[c], base + 1024, i)]


def b_setup(P):
    P.I('v_lshlrev_b32 v11, 4, v1')
    for t in range(4):
        P.I('s_add_u32 s60, s56, %d\ns_and_b32 s60, s60, 3\ns_mul_i32 s60, s60, %d\nv_add_u32 v%d, s60, v11' % (t, TP, V2_B + t))
    P.I('s_mul_i32 s60, s%d, %d\ns_mul_i32 s61, s56, %d\ns_add_u32 s%d, s60, s61' % (S_TB2, 4 * TP, NKS * 1024, S_BO))
    P.I('s_add_u32 s60, s%d, %d\ns_cmp_eq_u32 s56, 3\ns_cselect_b32 s%d, 0x7f000000, s60' % (S_BO, (NKS - 1) * 1024, S_BL))


def b_load(i, aux):
    out = []
    for t in range(4):
        g = []
        if t == 0 and i < NKS - 1:
            g.append('s_add_u32 s61, s%d, %d' % (S_BO, i * 1024))
        so = 61 if i < NKS - 1 else S_BL
        g.append('buffer_load_dwordx4 %s, v%d, s[16:19], s%d offen %s' % (v(V_B + 16 * (i % NB) + 4 * t, 4), V2_B + t, so, aux))
        out.append(g)
    return out


def x_setup(P):
    P.I('''v_and_b32 v11, 15, v1
v_lshrrev_b32 v12, 4, v1
v_lshlrev_b32 v11, 10, v11
v_lshl_add_u32 v9, v12, 3, v11
s_lshl_b32 s60, s%d, 2
s_add_u32 s60, s60, s56
s_lshl_b32 s60, s60, 14
s_lshl_b32 s61, s%d, 7
s_add_u32 s69, s60, s61
v_and_b32 v13, 1, v12
v_lshl_add_u32 v13, v13, 5, v11
v_lshrrev_b32 v12, 1, v12
v_lshl_add_u32 v%d, v12, 4, v13''' % (S_TB2, S_CB2, V2_X))


def x_loads():
    return [['buffer_load_dwordx2 %s, v9, s[4:7], s69 offen offset:%d' % (v(V_XR + 2 * c, 2), 32 * c)] for c in range(4)]


def acc2(c, t):
    return V_ACC2 + 16 * t + 4 * c


def park(P):
    for i in range(NPARK):
        for c in range(4):
            P.I('\n'.join(a_read(i, c)))
    P.I('s_waitcnt lgkmcnt(0)')


def late_w(P, lo, hi):
    for i in range(lo, hi):
        P.I('\n'.join(flat(p2_w_dma(i))))


def poll(P, flags_base, spin_max):
    P.I('''s_mul_i32 s60, s%d, 21846
s_lshr_b32 s60, s60, 16
s_mul_i32 s60, s60, 23
s_mul_i32 s61, s56, 5
s_add_u32 s61, s61, 2
s_cmp_eq_u32 s56, 0
s_cselect_b32 s61, 0, s61
s_cselect_b32 s62, 7, 5
s_add_u32 s60, s60, s61
s_lshl_b32 s60, s60, 7
s_add_u32 s70, s60, 0x%x
v_min_u32 v11, s62, v1
v_lshlrev_b32 v11, 7, v11
s_mov_b32 s61, 0''' % (S_TB2, flags_base))
    P.I('L_fspin:')
    P.I('buffer_load_dwordx4 v[48:51], v11, s[28:31], s70 offen sc1\ns_add_u32 s61, s61, 1\ns_waitcnt vmcnt(0)')
    P.I('v_and_b32 v48, v48, v49\nv_and_b32 v50, v50, v51\nv_and_b32 v48, v48, v50\nv_cmp_ne_u32 vcc, 1, v48')
    P.I('s_cmp_ge_u32 s61, %d\ns_cbranch_scc1 L_fok\ns_nop 2\ns_cbranch_vccz L_fok\ns_branch L_fspin' % spin_max)
    P.I('L_fok:')


def main(P, aux):
    D = NB - 1
    for i in range(D):
        P.I('\n'.join(flat(b_load(i, aux))))
    for i in range(NKS):
        mf, fill = [], {}
        for t in range(4):
            for c in range(4):
                mf.append('v_mfma_f32_16x16x32_bf16 %s, %s, %s, %s' % (v(acc2(c, t), 4), v(a_src(i, c), 4), v(V_B + 16 * (i % NB) + 4 * t, 4), '0' if i == 0 else v(acc2(c, t), 4)))
        gl = []
        if i + D < NKS:
            gl += b_load(i + D, aux)
        if i == NPARK + 1:
            gl += x_loads()
        spread(fill, 0, 9, gl)
        if NPARK <= i + 1 < NKS:
            rd = []
            for c in range(4):
                rd += a_read(i + 1, c)
            for n, r in enumerate(rd):
                fill.setdefault(2 + n, []).append(r)
        P.I('\n'.join(interleave(mf, fill)))


def tail(P, aux):
    P.I('v_lshlrev_b32 v11, 4, v1\nv_add_u32 v10, s%d, v11' % S_M02)
    RA = {1: 14, 2: 12, 3: 13}
    for t in range(1, 4):
        P.I('s_sub_u32 s60, s56, %d\ns_and_b32 s60, s60, 3\ns_mul_i32 s60, s60, %d\nv_add_u32 v%d, s60, v11' % (t, WREG, RA[t]))
    for c in range(4):
        for h in range(2):
            x = V_XR + 2 * c + h
            P.I('v_lshlrev_b32 v%d, 16, v%d\nv_and_b32 v%d, 0xffff0000, v%d' % (16 + 4 * c + 2 * h, x, 17 + 4 * c + 2 * h, x))
    for t in range(1, 4):
        for c in range(4):
            P.I('ds_write_b128 v10, %s offset:%d' % (v(acc2(c, t), 4), (t - 1) * 4096 + c * 1024))
    for q in range(8):
        P.I('v_pk_add_f32 %s, %s, %s' % (v(V_ACC2 + 2 * q, 2), v(V_ACC2 + 2 * q, 2), v(16 + 2 * q, 2)))
    P.I('s_waitcnt lgkmcnt(0)\ns_barrier')
    for t in range(1, 4):
        for c in range(4):
            P.I('ds_read_b128 %s, v%d offset:%d' % (v(acc2(c, t), 4), RA[t], (t - 1) * 4096 + c * 1024))
    for cp in range(2):
        for c in (2 * cp, 2 * cp + 1):
            for t in range(1, 4):
                for h in range(2):
                    P.I('v_pk_add_f32 %s, %s, %s' % (v(acc2(c, 0) + 2 * h, 2), v(acc2(c, 0) + 2 * h, 2), v(acc2(c, t) + 2 * h, 2)))
        o = 32 + 4 * cp
        for c in (2 * cp, 2 * cp + 1):
            P.I('v_cvt_pk_bf16_f32 v%d, v%d, v%d\nv_cvt_pk_bf16_f32 v%d, v%d, v%d' % (32 + 2 * c, acc2(c, 0), acc2(c, 0) + 1, 33 + 2 * c, acc2(c, 0) + 2, acc2(c, 0) + 3))
        P.I('v_permlane16_swap_b32 v%d, v%d\nv_permlane16_swap_b32 v%d, v%d' % (o, o + 2, o + 1, o + 3))
        P.I('buffer_store_dwordx4 %s, v%d, s[%d:%d], s69 offen offset:%d %s' % (v(o, 4), V2_X, 8, 11, 64 * cp, aux))
```

```python
from p2b import *
import p2b

S_WA, S_WC, S_WBP, S_WBM = 64, 65, 72, 73
S_BOP, S_BOM = 67, 74
S_M02 = 66
ALT = [True]
SMAP = [False]
R2, R0, R1 = 102400, 0, 51200


def slot_off(i):
    s_ = i % RING
    if not SMAP[0]:
        return s_ * 4096
    return (R2, R0, R1)[s_ // 3] + 4096 * (s_ % 3)


def a_read(i, c):
    d = a_src(i, c)
    off = slot_off(i)
    reg = WA_REG[c]
    if SMAP[0] and off >= R2:
        off -= R2
        reg = WA_HI[c]
    return ['ds_read_b64_tr_b16 %s, v%d offset:%d ;@use W%d' % (v(d, 2), reg, off, i),
            'ds_read_b64_tr_b16 %s, v%d offset:%d ;@use W%d' % (v(d + 2, 2), reg, off + 1024, i)]


WA_HI = WA_REG


def shift(up):
    return ['v_%s_u32 v%d, %d, v%d' % ('add' if up else 'subrev', r, R2, r) for r in WA_REG]


def park(P, lo=0, hi=NPARK, wait=True):
    if SMAP[0] and lo == 0:
        P.I('\n'.join(shift(True)))
    for i in range(lo, hi):
        if SMAP[0] and i == 3:
            P.I('\n'.join(shift(False)))
        for c in range(4):
            P.I('\n'.join(a_read(i, c)))
    if wait:
        P.I('s_waitcnt lgkmcnt(0)')


def w_setup(P):
    P.I('s_and_b32 s75, s%d, 1' % S_CB2 if ALT[0] else 's_mov_b32 s75, 0')
    P.I('s_mul_i32 s76, s56, 15\ns_lshl_b32 s77, s%d, 7\ns_lshl_b32 s78, s75, 1' % S_CB2)
    for r, so, ks in ((20, S_WA, 's_add_u32 s61, s76, s78'), (12, S_WC, 's_add_u32 s61, s76, 2\ns_sub_u32 s61, s61, s78'), (24, S_WBP, 's_add_u32 s61, s76, 1')):
        P.I(ks)
        P.I('s_cmp_lt_u32 s61, 16')
        P.I('s_cselect_b32 s%d, s40, s48\ns_cselect_b32 s%d, s41, s49' % (r, r + 1))
        P.I('s_mov_b32 s60, 0x80000\ns_cselect_b32 s%d, s60, 0x158000\ns_mov_b32 s%d, 0x20000' % (r + 2, r + 3))
        P.I('s_cselect_b32 s60, 0, 16\ns_sub_u32 s61, s61, s60\ns_lshl_b32 s61, s61, 15\ns_add_u32 s%d, s61, s77' % so)
    P.I('s_sub_u32 s%d, s%d, 0x8000\ns_lshl_b32 s60, s75, 16\ns_sub_u32 s%d, s%d, s60\ns_add_u32 s%d, s%d, s60' % (S_WBP, S_WBP, S_WBM, S_WBP, S_WBP, S_WBP))
    P.I('s_sub_u32 s84, s%d, s60' % S_WBP)
    P.I('s_mul_i32 s%d, s56, %d' % (S_M02, 12288 if SMAP[0] else WREG))
    P.I('''v_lshrrev_b32 v11, 3, v1
v_lshrrev_b32 v12, 2, v11
v_and_b32 v11, 3, v11
v_lshl_add_u32 v11, v12, 3, v11
v_lshrrev_b32 v12, 4, v1
v_lshlrev_b32 v13, 1, v12
v_and_b32 v14, 7, v1
v_xor_b32 v14, v14, v13
v_lshlrev_b32 v14, 4, v14
v_lshl_add_u32 v%d, v11, 10, v14''' % V2_WD)


def a_addr_setup(P):
    P.I('''v_lshrrev_b32 v12, 4, v1
v_bfe_u32 v13, v1, 2, 2
v_and_b32 v14, 3, v1
v_and_b32 v15, 1, v12
v_lshrrev_b32 v12, 1, v12
v_lshl_add_u32 v15, v15, 2, v13
v_lshrrev_b32 v13, 1, v15
v_lshlrev_b32 v13, 5, v13
v_lshl_add_u32 v13, v15, 7, v13
v_lshl_add_u32 v13, v14, 3, v13
v_lshl_add_u32 v13, v12, 11, v13
v_add_u32 v%d, s%d, v13
v_xor_b32 v10, 32, v%d
v_xor_b32 v14, 64, v%d
v_xor_b32 v15, 0x60, v%d''' % (V2_WA, S_M02, V2_WA, V2_WA, V2_WA))


def w_dma(i):
    slot = i % RING
    if i == 0:
        srd_, so, k = 20, S_WA, 0
    elif i == 2:
        srd_, so, k = 12, S_WC, 0
    elif i < 12:
        srd_, so, k = 24, (S_WBM if i & 2 else S_WBP), i
    else:
        srd_, so, k = 24, 84, i
    out = []
    for jj in range(4):
        rowoff = (16 * (jj >> 1) + 4 * (jj & 1)) * 1024 + k * 32768
        g = []
        if jj == 0:
            g.append('s_add_u32 m0, s%d, %d' % (S_M02, slot_off(i)))
        g.append('s_add_u32 s60, s%d, %d' % (so, rowoff - 1024 * jj))
        g.append('buffer_load_dwordx4 v%d, s[%d:%d], s60 offen offset:%d lds ;@def W%d' % (V2_WD, srd_, srd_ + 3, 1024 * jj, i))
        out.append(g)
    return out


def late_w(P, lo, hi):
    for i in range(lo, hi):
        P.I('\n'.join(flat(w_dma(i))))


def b_setup(P):
    P.I('v_lshlrev_b32 v11, 4, v1')
    for t in range(4):
        P.I('s_add_u32 s60, s56, %d\ns_and_b32 s60, s60, 3\ns_mul_i32 s60, s60, %d\nv_add_u32 v%d, s60, v11' % (t, TP, V2_B + t))
    P.I('s_mul_i32 s60, s%d, %d\ns_mul_i32 s61, s56, %d\ns_add_u32 s%d, s60, s61' % (S_TB2, 4 * TP, NKS * 1024, S_BO))
    P.I('s_add_u32 s60, s%d, %d\ns_cmp_eq_u32 s56, 3\ns_cselect_b32 s%d, 0x7f000000, s60' % (S_BO, (NKS - 1) * 1024, S_BL))
    P.I('s_mov_b32 s70, s%d\ns_lshl_b32 s60, s75, 11\ns_sub_u32 s%d, s70, s60\ns_add_u32 s%d, s70, s60' % (S_BO, S_BOM, S_BOP))


TAILW = [False]
LATE0 = [15]
DEPTH = [4]
SCHED = [1]
V_XR2 = 240
XEARLY = [True]


def b_blocks(D):
    free = {48: -1, 64: -1, 80: -1}
    lim = {16: 5, 32: 6}
    free[16] = -1
    free[32] = -1
    for k, r in enumerate(PARK):
        free[r] = k
    if XEARLY[0]:
        del free[80]
    else:
        lim[PARK[5]] = NPARK + 1
    out = []
    for i in range(NKS):
        t_issue = max(i - D, -1)
        cand = [r for r, last in free.items() if (last < t_issue or last == -1) and (r not in lim or i < lim[r])]
        cand.sort(key=lambda r: (r not in lim, free[r]))
        r = cand[0]
        free[r] = i
        out.append(r)
    return out


def b_load(i, aux, blk):
    out = []
    base = (S_BOM if i & 2 else S_BOP) if i < 12 else 70
    for t in range(4):
        g = []
        if t == 0 and i < NKS - 1:
            g.append('s_add_u32 s61, s%d, %d' % (base, i * 1024))
        so = 61 if i < NKS - 1 else S_BL
        g.append('buffer_load_dwordx4 %s, v%d, s[16:19], s%d offen %s' % (v(blk[i] + 4 * t, 4), V2_B + t, so, aux))
        out.append(g)
    return out


def main(P, aux):
    D = DEPTH[0]
    blk = b_blocks(D)
    for i in range(D):
        P.I('\n'.join(flat(b_load(i, aux, blk))))
    for i in range(NKS):
        mf, fill = [], {}
        lastw = TAILW[0] and i == NKS - 1
        for t in ((1, 2, 3, 0) if lastw else range(4)):
            for c in range(4):
                mf.append('v_mfma_f32_16x16x32_bf16 %s, %s, %s, %s' % (v(acc2(c, t), 4), v(a_src(i, c), 4), v(blk[i] + 4 * t, 4), '0' if i == 0 else v(acc2(c, t), 4)))
        if lastw:
            fill.setdefault(0, []).extend(['v_lshlrev_b32 v11, 4, v1', 'v_add_u32 v13, s%d, v11' % S_M02])
            for t in (1, 2):
                for c in range(4):
                    if 4 * t + 4 + c < 16:
                        fill.setdefault(4 * t + 4 + c, []).append('ds_write_b128 v13, %s offset:%d' % (v(acc2(c, t), 4), R1 + (t - 1) * 4096 + c * 1024))
        gl = []
        if i + D < NKS:
            gl += b_load(i + D, aux, blk)
        if LATE0[0] + i < NKS:
            for n, g in enumerate(w_dma(LATE0[0] + i)):
                fill.setdefault(4 * n + 2, []).extend(g)
        if i == NPARK + 1 and not XEARLY[0]:
            gl += [[x.replace(v(V_XR + 2 * c, 2), v(V_XR2 + 2 * c, 2)) for x in g] for c, g in enumerate(x_loads())]
        if SCHED[0] == 0:
            spread(fill, 0, 7, gl)
        else:
            off = SCHED[0] - 1
            for n, g in enumerate(gl):
                fill.setdefault((4 * n + off) if n < 4 else (4 * (n - 4) + 2 + off) % 16, []).extend(g)
        if NPARK <= i + 1 < NKS:
            rd = []
            if SMAP[0] and i + 1 in (9, 12):
                fill.setdefault(0, []).extend(shift(i + 1 == 9))
            for c in range(4):
                rd += a_read(i + 1, c)
            pos = range(2, 10) if SCHED[0] == 0 else [p for p in range(14) if p % 4 != (SCHED[0] - 1)][:8]
            for n, r in zip(pos, rd):
                fill.setdefault(n, []).append(r)
        P.I('\n'.join(interleave(mf, fill)))


def x_early(P):
    if XEARLY[0]:
        for c, g in enumerate(x_loads()):
            P.I(g[0].replace(v(V_XR + 2 * c, 2), v(80 + 2 * c, 2)))


def tail2(P, aux, XR):
    RA = {1: 14, 2: 12, 3: 15}
    if not TAILW[0]:
        P.I('v_lshlrev_b32 v11, 4, v1\nv_add_u32 v13, s%d, v11' % S_M02)
    for t in range(1, 4):
        P.I('s_sub_u32 s60, s56, %d\ns_and_b32 s60, s60, 3\ns_mul_i32 s60, s60, 12288\nv_add_u32 v%d, s60, v11' % (t, RA[t]))
    for t in range(3 if TAILW[0] else 1, 4):
        for c in range(4):
            P.I('ds_write_b128 v13, %s offset:%d' % (v(acc2(c, t), 4), R1 + (t - 1) * 4096 + c * 1024))
    for c in range(4):
        for h in range(2):
            x = XR + 2 * c + h
            P.I('v_lshlrev_b32 v%d, 16, v%d\nv_and_b32 v%d, 0xffff0000, v%d' % (16 + 4 * c + 2 * h, x, 17 + 4 * c + 2 * h, x))
    for q in range(8):
        P.I('v_pk_add_f32 %s, %s, %s' % (v(V_ACC2 + 2 * q, 2), v(V_ACC2 + 2 * q, 2), v(16 + 2 * q, 2)))
    P.I('s_waitcnt lgkmcnt(0)\ns_barrier')
    for c in range(4):
        for t in range(1, 4):
            P.I('ds_read_b128 %s, v%d offset:%d' % (v(acc2(c, t), 4), RA[t], R1 + (t - 1) * 4096 + c * 1024))
    for cp in range(2):
        cs = (2 * cp, 2 * cp + 1)
        for c in cs:
            for h in range(2):
                P.I('v_pk_add_f32 %s, %s, %s' % (v(acc2(c, 0) + 2 * h, 2), v(acc2(c, 0) + 2 * h, 2), v(acc2(c, 1) + 2 * h, 2)))
            for h in range(2):
                P.I('v_pk_add_f32 %s, %s, %s' % (v(acc2(c, 2) + 2 * h, 2), v(acc2(c, 2) + 2 * h, 2), v(acc2(c, 3) + 2 * h, 2)))
        for c in cs:
            for h in range(2):
                P.I('v_pk_add_f32 %s, %s, %s' % (v(acc2(c, 0) + 2 * h, 2), v(acc2(c, 0) + 2 * h, 2), v(acc2(c, 2) + 2 * h, 2)))
        o = 32 + 4 * cp
        for c in cs:
            P.I('v_cvt_pk_bf16_f32 v%d, v%d, v%d\nv_cvt_pk_bf16_f32 v%d, v%d, v%d' % (32 + 2 * c, acc2(c, 0), acc2(c, 0) + 1, 33 + 2 * c, acc2(c, 0) + 2, acc2(c, 0) + 3))
        P.I('v_permlane16_swap_b32 v%d, v%d\nv_permlane16_swap_b32 v%d, v%d' % (o, o + 2, o + 1, o + 3))
        P.I('buffer_store_dwordx4 %s, v%d, s[8:11], s69 offen offset:%d %s' % (v(o, 4), V2_X, 64 * cp, aux))


def tail(P, aux):
    if SMAP[0]:
        return tail2(P, aux, 80 if XEARLY[0] else V_XR2)
    old = p2b.V_XR
    p2b.V_XR = 80 if XEARLY[0] else V_XR2
    try:
        p2b.tail(P, aux)
    finally:
        p2b.V_XR = old


if __name__ == '__main__':
    for D in (2, 3, 4, 5):
        print(D, b_blocks(D))
```

```python
import sys, re
from p1c import *
import nz
import ld, p2, p2b, p2c, duty
from gen_f import NAME, HEADER, kd, head, TS

OPT = dict(split=8, st_aux='sc0 sc1', ld_aux='sc1', out_aux='', defer=2, cs=5, map2='8x4', pre_flag=0, nocs=False,
           p2alt=True, lpoll=False, depth=3, xearly=True, order='xw', early_stats=False, p2twice=False, sched=1, barts=None, w2pf=True, epi=2, sp0=8, ct=0, tailsync=True, xpos=0, xfirst=False, perm=None, pd=2, prio=1, smap=True, early=True, flagfirst=True, mid=6, rot=None, tailw=True, nobar=False, ep4=True, ew=4, touch=None, c0skip=0, wt=[3, 3], cheapcs=True, xm=0)


def build(timing=False, **kw):
    o = dict(OPT)
    o.update(kw)
    AUX['rot'] = o['rot']
    AUX['alt'] = o['order']
    p2c.DEPTH[0] = o['depth']
    p2c.SCHED[0] = o['sched']
    p2c.XEARLY[0] = o['xearly']
    AUX['barts'] = o['barts']
    AUX['xm'] = o['xm']
    p2c.ALT[0] = o['p2alt']
    p2c.SMAP[0] = o['smap']
    p2c.TAILW[0] = o['tailw'] and o['smap']
    duty.ROT[0] = o['rot'] or [0] * 8
    duty.PERM[0] = o['perm'] or list(range(8))
    kn = NAME + '_kernel'
    P = Prog()
    ts = TS(timing)
    if o['barts']:
        ts.NAMES = ['c0'] + ['x%d' % i for i in range(8)] + ['main', 'epi', 'x']
    P.I(kn + ':')
    ts.start(P)
    P.I('s_load_dwordx16 s[36:51], s[0:1], 0\ns_load_dwordx4 s[52:55], s[0:1], 64')
    P.I('s_cmp_ge_u32 s2, 256\ns_cbranch_scc1 L_end')
    table_load(P)
    wave_split(P)
    P.I('s_cmp_ge_u32 s79, 4\ns_cbranch_scc1 L_loader')
    P.I('s_lshr_b32 s60, s2, 3\ns_lshl_b32 s60, s60, 2\ns_add_u32 s60, s60, s56\ns_lshl_b32 s60, s60, 9\nv_lshl_add_u32 v11, v1, 3, s60')
    P.I('v_min_u32 v11, L_code_end-L_pfpc-8, v11\nv_and_b32 v11, -4, v11')
    if o['xfirst']:
        P.I('s_waitcnt lgkmcnt(0)')
        srd(P, SRD_X, 36, 2048 * 1024)
        x_rows(P)
        P.I('global_load_dwordx2 v[100:101], v11, s[84:85]')
    else:
        P.I('global_load_dwordx2 v[100:101], v11, s[84:85]')
        P.I('s_waitcnt lgkmcnt(0)')
        srd(P, SRD_X, 36, 2048 * 1024)
        x_rows(P)
    P.I('s_branch L_compute')
    P.new_path()
    P.I('L_loader:')
    lane_patterns(P)
    P.I('s_waitcnt lgkmcnt(0)')
    ts.save_start(P)
    table_decode(P)
    P.I('s_bitcmp1_b32 s59, 7\ns_cbranch_scc1 L_lidle')
    P.I('s_cmp_lt_u32 s58, 8\ns_cbranch_scc1 L_latt0')
    sp = o['split']

    def first(role):
        if o['order'] == 'wx':
            w_setup(P, role)
            ts(P, 'setup')
            issue(P, role, 0, 0, 3)
            x_setup(P, role)
        else:
            x_setup(P, role)
            rot_x(P)
            ts(P, 'setup')
            issue(P, role, 0, 0, 3)
            w_setup(P, role)
            rot_w(P, role)
        issue(P, role, 0, 3, 99)
        ts(P, 'issued')
        issue(P, role, 1, 0, o['sp0'])
        aux_setup(P)
        if o['c0skip']:
            P.I('s_waitcnt vmcnt(%d)' % (o['sp0'] + o['c0skip']))
        else:
            P.I('s_nop 0 ;@use C0')
        P.I('s_branch L_l%s' % role)
    first('ffn')
    P.new_path()
    P.I('L_latt0:')
    first('att')
    for role in ('ffn', 'att'):
        P.new_path()
        P.I('L_l%s:' % role)
        lag = 2 if o['tailsync'] else 1
        for c in range(8):
            if c:
                P.I('s_nop 0 ;@use C%d' % c)
            if c == 3 and o['nobar']:
                ready_clear(P)
            if c == o['ct'] + lag:
                tag_wait(P, role)
            if c == o['cs'] + lag:
                stats_check(P, role)
            if o['barts']:
                P.I('s_memtime s[80:81]\ns_waitcnt lgkmcnt(0)\ns_mov_b32 s%d, s80' % (86 + c))
            P.I('s_barrier')

            def sync_ops():
                if c == o['ct']:
                    tag_load(P)
                if c == o['ct'] + lag:
                    stats_publish(P, role)
                if c == o['cs']:
                    stats_fetch(P, role)
            if not o['tailsync']:
                sync_ops()
            if c + 1 < 8:
                issue(P, role, c + 1, sp if c else o['sp0'], 99)
            if c + 2 < 8:
                issue(P, role, c + 2, 0, sp)
            if o['tailsync']:
                sync_ops()
            if o['wt']:
                k0, lead = o['wt']
                if c == 0:
                    w_touch_setup(P, k0, 8 - k0)
                if k0 <= c + lead < 8:
                    w_touch(P, c + lead)
            if o['touch'] is not None and c == o['touch']:
                srd(P, 20, 50, 2048 * 1024)
                P.I('s_lshl_b32 s60, s2, 13\nv_mov_b32 v36, 0\ns_mov_b64 exec, 1\nbuffer_load_dword v37, v36, s[20:23], s60 offen\ns_mov_b64 exec, -1')
            if c == 6 and o['w2pf']:
                (w2_l2_prefetch84 if o['map2'] == '8x4' else w2_l2_prefetch)(P)
            if c == 7 and o['early']:
                p2b.decode(P, o['map2'])
                p2c.w_setup(P)
                p2c.late_w(P, 0, 3)
        if role == 'ffn':
            P.I('s_branch L_lw2')
    P.I('L_lw2:')
    if not o['early']:
        p2b.decode(P, o['map2'])
        p2c.w_setup(P)
    P.I('s_barrier')
    P.I('L_lw2b:')
    p2c.late_w(P, 3 if o['early'] else 0, p2.RING)
    ts(P, 'w2iss')
    P.I('s_waitcnt vmcnt(0)')
    if o['nobar']:
        P.I('s_lshl_b32 s60, s56, 2\ns_add_u32 s60, s60, %d\nv_mov_b32 v26, s60\nv_mov_b32 v27, 1\nds_write_b32 v26, v27\ns_waitcnt lgkmcnt(0)' % L_RDY)
    else:
        P.I('s_barrier')
    P.I('s_branch L_fin')
    P.new_path()
    P.I('L_lidle:')
    aux_setup(P)
    P.I('s_bitcmp1_b32 s59, 6\ns_cbranch_scc0 L_nopub\ns_cmp_lg_u32 s56, 0\ns_cbranch_scc1 L_nopub')
    P.cond_begin()
    publish_tag(P)
    P.cond_end()
    P.I('L_nopub:')
    ready_clear(P)
    tag_load(P)
    P.I('s_waitcnt vmcnt(0)')
    tag_wait(P, 'idle')
    P.I('s_barrier')
    stats_publish(P, 'idle')
    p2b.decode(P, o['map2'])
    p2c.w_setup(P)
    if o['early']:
        p2c.late_w(P, 0, 3)
    P.I('s_branch L_lw2b')
    P.new_path()
    P.I('L_compute:')
    ts.save_start(P)
    table_decode(P)
    P.I('s_waitcnt vmcnt(%d)' % (1 if o['xfirst'] else 0))
    srd_off(P, SRD_AUX, 54, STATS_OFF, 0x200000)
    srd_off(P, 16, 54, ACT_OFF, ACT_BYTES)
    stats_compute(P, [40, 44], [48, 56])
    P.I('s_bitcmp1_b32 s59, 7\ns_cbranch_scc1 L_cidle')
    P.I('s_cmp_lt_u32 s58, 8\ns_cbranch_scc1 L_catt')
    for role in ('ffn', 'att'):
        if role == 'att':
            P.new_path()
            P.I('L_catt:')
        frag_addr_setup(P, role)
        if o['cheapcs'] and role == 'ffn':
            ffn_addr_extra(P)
        ones_setup(P)
        P.I('s_waitcnt vmcnt(0)')
        if o['prio']:
            P.I('s_setprio %d' % o['prio'])
        if o['cheapcs']:
            assert o['ep4'] and o['ew'] == 4
            if role == 'ffn':
                ffn_compute3(P, lambda P, n: ts(P, 'c0'), ffn_pre())
            else:
                att_compute3(P, lambda P, n: ts(P, 'c0'), att_pre())
        elif role == 'ffn' and o['pd'] == 3:
            ffn_compute2(P, lambda P, n: ts(P, 'c0'), None if o['nocs'] else extra_ffn, True, 3)
        else:
            (ffn_compute if role == 'ffn' else att_compute)(P, lambda P, n: ts(P, 'c0'), None if o['nocs'] else (extra_ffn if role == 'ffn' else extra_att), True, ((ffn_pre() if role == 'ffn' else att_pre()) if o['ep4'] else None))
        ts(P, 'main')
        if o['ep4']:
            if role == 'ffn':
                ffn_epilogue4(P, o['st_aux'], o['defer'], True, o['ew'], cs_rest=ffn_cs_rest if o['cheapcs'] else None)
            else:
                att_epilogue4(P, o['st_aux'])
        elif role == 'ffn':
            ffn_epilogue2(P, o['st_aux'], o['defer'])
        else:
            att_epilogue2(P, o['st_aux'])
        ts(P, 'epi')
        if role == 'ffn':
            P.I('s_branch L_cflag')
    P.I('L_cflag:')
    flag_offset(P, 62)
    P.I('s_mov_b32 s71, s62')
    P.I('L_cp2:')
    p2b.decode(P, o['map2'])
    if o['xpos'] == 0:
        p2b.x_setup(P)
        p2c.x_early(P)
    p2c.w_setup(P)
    p2c.a_addr_setup(P)
    if o['nobar']:
        P.I('v_mov_b32 v12, %d\nds_read_b32 v12, v12' % L_TAG)
        p2c.b_setup(P)
        srd(P, 8, 50, 2048 * 1024)
        P.I('v_readfirstlane_b32 s%d, v12' % S_TAG)
        ready_wait(P, SPIN_MAX)
        ts(P, 'cw0')
        p2c.park(P, wait=False)
        P.I('s_waitcnt vmcnt(4)')
        flag_set(P)
        ts(P, 'flag')
        P.I('s_waitcnt lgkmcnt(0)')
        p2c.late_w(P, p2.RING, p2.RING + o['mid'])
        poll(P, SPIN_MAX)
        p2c.LATE0[0] = p2.RING + o['mid']
    elif o['flagfirst']:
        assert o['xpos'] == 0
        P.I('v_mov_b32 v12, %d\nds_read_b32 v12, v12' % L_TAG)
        p2c.b_setup(P)
        srd(P, 8, 50, 2048 * 1024)
        P.I('v_readfirstlane_b32 s%d, v12' % S_TAG)
        P.I('s_waitcnt vmcnt(4)')
        flag_set(P)
        ts(P, 'flag')
        P.I('s_barrier')
        ts(P, 'cw0')
        p2c.park(P, 0, 3)
        p2c.late_w(P, p2.RING, p2.RING + min(3, o['mid']))
        p2c.park(P, 3, 6)
        p2c.late_w(P, p2.RING + min(3, o['mid']), p2.RING + o['mid'])
        poll(P, SPIN_MAX)
        p2c.LATE0[0] = p2.RING + o['mid']
    else:
        P.I('s_barrier')
        tag_from_lds(P)
        ts(P, 'cw0')
        p2c.park(P)
        p2c.b_setup(P)
        srd(P, 8, 50, 2048 * 1024)
        P.I('s_waitcnt vmcnt(4)')
        flag_set(P)
        ts(P, 'flag')
        p2c.late_w(P, p2.RING, p2.NKS)
        poll(P, SPIN_MAX)
        p2c.LATE0[0] = p2.NKS
    ts(P, 'p2go')
    p2c.main(P, o['ld_aux'])
    if o['p2twice']:
        ts(P, 'cw1')
        p2c.main(P, o['ld_aux'])
    ts(P, 'p2main')
    p2c.tail(P, o['out_aux'])
    P.I('s_branch L_fin')
    P.new_path()
    P.I('L_cidle:')
    P.I('s_mov_b32 s71, 0x%x' % HUGE)
    P.I('s_waitcnt vmcnt(0)\ns_barrier\ns_branch L_cp2')
    P.new_path()
    P.I('L_fin:')
    ts.dump(P)
    P.I('L_end:\ns_endpgm')
    body = P.finalize() + table_text() + 'L_code_end:\n'
    txt = HEADER + '; @launch grid=(256,1,1) block=(512,1,1) lds=%d\n' % LDS_C
    txt += '.amdgcn_target "amdgcn-amd-amdhsa--gfx950"\n.text\n' + head(kn) + body + kd(kn, 256, 256)
    return txt


if __name__ == '__main__':
    out = sys.argv[1] if len(sys.argv) > 1 else 'i0.s'
    open(out, 'w').write(build())
    print('wrote', out)
```

```python
import sys, json
import gen_f, gen_i
from gen_i import *
def probe_kernel(idx, scale, red='avg'):
    P = Prog()
    P.I('probe_kernel:')
    P.I('s_load_dwordx4 s[52:55], s[0:1], 64')
    P.I('s_cmp_ge_u32 s2, 1\ns_cbranch_scc1 Lp_end')
    P.I('v_and_b32 v1, 63, v0\ns_waitcnt lgkmcnt(0)')
    srd_off(P, 32, 54, 0x4000000, 0x40000)
    for q in range(4):
        P.I('v_add_u32 v2, %d, v1\nv_lshlrev_b32 v2, 10, v2' % (64*q))
        P.I('buffer_load_dword v%d, v2, s[32:35], 0 offen offset:%d\nbuffer_load_dword v%d, v2, s[32:35], 0 offen offset:60' % (8+q, 4*idx, 12+q))
    P.I('v_min_u32 v12, v12, v13\nv_min_u32 v14, v14, v15\nv_min_u32 v12, v12, v14\ns_mov_b32 s11, -1')
    for l in range(64):
        P.I('v_readlane_b32 s5, v12, %d\ns_nop 3\ns_min_u32 s11, s11, s5' % l)
    for q in range(4):
        P.I('v_max_u32 v%d, s11, v%d\nv_subrev_u32 v%d, s11, v%d\nv_min_u32 v%d, 0x4000, v%d' % (8+q, 8+q, 8+q, 8+q, 8+q, 8+q))
    if red == 'avg':
        P.I('v_add_u32 v8, v8, v9\nv_add_u32 v10, v10, v11\nv_add_u32 v8, v8, v10\ns_mov_b32 s10, 0')
        for l in range(64): P.I('v_readlane_b32 s4, v8, %d\ns_nop 3\ns_add_u32 s10, s10, s4' % l)
        P.I('s_lshr_b32 s20, s10, 8')
    else:
        P.I('v_max_u32 v8, v8, v9\nv_max_u32 v10, v10, v11\nv_max_u32 v8, v8, v10\ns_mov_b32 s20, 0')
        for l in range(64): P.I('v_readlane_b32 s4, v8, %d\ns_nop 3\ns_max_u32 s20, s20, s4' % l)
    P.I('s_mul_i32 s20, s20, %d\ns_min_u32 s20, s20, 100000' % scale)
    P.I('s_memrealtime s[22:23]\ns_waitcnt lgkmcnt(0)\ns_mov_b32 s24, s22')
    P.I('Lp_spin:')
    P.I('s_memrealtime s[22:23]\ns_waitcnt lgkmcnt(0)\ns_sub_u32 s25, s22, s24\ns_cmp_lt_u32 s25, s20\ns_cbranch_scc1 Lp_spin')
    P.I('Lp_end:\ns_endpgm')
    return head('probe_kernel') + P.finalize().replace('v_cmp_gt_u32 s[20:21], 0x40, v1', 's_nop 0') + kd('probe_kernel', 32, 32)
def mk(name, txt, idx, scale, red='avg'):
    lines = txt.split('\n')
    L = [i for i,l in enumerate(lines) if l.startswith('; @launch')][0]
    l0 = lines[L].replace('; @launch ', '; @launch kernel=%s_kernel ' % gen_i.NAME)
    ls = lines[:L] + [l0, '; @launch kernel=probe_kernel grid=(1,1,1) block=(64,1,1) lds=0'] + lines[L+1:]
    open('var/%s.s' % name, 'w').write('\n'.join(ls) + probe_kernel(idx, scale, red))
if __name__ == '__main__':
    kw = json.loads(sys.argv[1]) if len(sys.argv) > 1 else {}
    txt = gen_i.build('rt', **kw)
    N = gen_f.TS.NAMES
    mk('r0', txt, 13, 0)
    mk('r1', txt, N.index('c0'), 4)
    mk('r2', txt, N.index('main'), 4)
    mk('r3', txt, N.index('p2go'), 4)
    mk('r4', txt, N.index('p2main'), 4)
    mk('r5', txt, 13, 4, 'max')
```

```python
from nz import *

EP = dict(tp=TP, parts=False, lagf=4)
PA = lambda b: 40 + 4 * b
PB = lambda b: 42 + 4 * b


def ffn_pre():
    L = ['v_and_b32 v12, 15, v1', 'v_lshlrev_b32 v12, 3, v12', 's_lshr_b32 s60, s56, 1', 's_mul_i32 s60, s60, 768',
         's_add_u32 s60, s60, %d' % (L_PR + 128), 'v_add_u32 v15, s60, v12']
    L += ['ds_read_b64 %s, v15 offset:%d' % (v(PA(b), 2), 128 * b) for b in range(6)]
    L += ['v_lshlrev_b32 v12, 1, v12', 'v_bfe_u32 v13, v1, 4, 1', 'v_mul_u32_u24 v13, %d, v13' % EP['tp'], 'v_lshrrev_b32 v14, 5, v1',
          'v_lshl_add_u32 v12, v14, 8, v12', 'v_add_u32 v%d, v12, v13' % V_ST]
    L += ['s_lshr_b32 s60, s56, 1', 's_mul_i32 s60, s60, 6', 's_mul_i32 s61, s57, 12', 's_add_u32 s60, s60, s61', 's_mul_i32 s78, s60, %d' % EP['tp']]
    if EP['parts']:
        L += ['s_and_b32 s60, s56, 1', 's_lshl_b32 s60, s60, 9', 's_add_u32 s78, s78, s60', 's_mul_i32 s61, s58, 3', 's_sub_u32 s76, s61, 8']
    else:
        L += ['s_and_b32 s60, s56, 1', 's_mul_i32 s60, s60, 3', 's_mul_i32 s61, s58, 6', 's_add_u32 s60, s60, s61', 's_sub_u32 s76, s60, 16']
    L += ['v_mul_f32 v%d, %s, v%d' % (PB(b), fbits(C0), PA(b) + 1) for b in range(6)]
    L += ['v_mul_f32 v%d, v%d, v%d' % (PA(b) + 1, PA(b) + 1, PA(b) + 1) for b in range(6)]
    L += ['v_mul_f32 v%d, v%d, v%d' % (PB(b) + 1, PA(b) + 1, PB(b)) for b in range(6)]
    L += ['v_rcp_f32 v%d, v%d' % (PA(b) + 1, PA(b) + 1) for b in range(6)]
    L += ['v_mul_f32 v%d, %s, v%d' % (PB(b) + 1, fbits(0.044715), PB(b) + 1) for b in range(6)]
    return L


def tag_read():
    return ['v_mov_b32 v9, %d' % L_TAG, 'ds_read_b32 v10, v9', 'v_mov_b32 v9, 0']


def part_flag(p):
    return ['s_nop 0 ;@use SP%d' % p, 's_mov_b64 exec, 1',
            'buffer_store_dword v10, v9, s[28:31], s83 offen offset:%d sc0 sc1' % (16 * p), 's_mov_b64 exec, -1']


def ffn_epilogue4(P, aux, defer=0, hoisted=True, W=4, nostore=False, cs_rest=None):
    TP = EP['tp']
    if not hoisted:
        P.I('\n'.join(ffn_pre()))
    if EP['parts']:
        P.I('\n'.join(tag_read()))
    T = 64
    blocks = [(uu, bp) for uu in range(3) for bp in range(3)]
    pend = []
    step = W // 4
    for b0 in range(0, 9, step):
        grp = blocks[b0:b0 + step]
        items = []
        for n, (uu, bp) in enumerate(grp):
            if bp == 0 and cs_rest and cs_rest(uu):
                P.I('\n'.join(cs_rest(uu)))
            if bp == 0:
                lim, sh = (60, 10) if EP['parts'] else (118, 9)
                P.I('s_add_u32 s60, s76, %d\ns_cmp_lt_u32 s60, %d\ns_cselect_b32 s61, s78, 0x%x\ns_lshl_b32 s60, s60, %d\ns_add_u32 s77, s61, s60' % (uu, lim, HUGE, sh))
            P.I('s_add_u32 s%d, s77, %d' % (64 + b0 + n, 2 * bp * TP))
            for q in range(4):
                tb = 2 * bp + (q >> 1)
                items.append(dict(G=ffn_acc(2 * uu, tb) + 2 * (q & 1), U=ffn_acc(2 * uu + 1, tb) + 2 * (q & 1),
                                  cG=cs_ffn(2 * uu) + 2 * (q & 1), cU=cs_ffn(2 * uu + 1) + 2 * (q & 1), tb=tb,
                                  t=T + 16 * ((b0 // step) % 2) + 2 * len(items), o=ffn_acc(2 * uu, 2 * bp) + q))
        L = []
        L += [pk('v_pk_fma_f32', x['G'], x['cG'], PA(x['tb']), x['G'], (None, 0, None)) for x in items]
        L += [pk('v_pk_mul_f32', x['t'], x['G'], x['G']) for x in items]
        L += [pk('v_pk_fma_f32', x['t'], x['t'], PB(x['tb']), PB(x['tb']), (None, 1, 0)) for x in items]
        L += [pk('v_pk_mul_f32', x['t'], x['t'], x['G']) for x in items]
        for x in items:
            L += ['v_exp_f32 v%d, v%d' % (x['t'], x['t']), 'v_exp_f32 v%d, v%d' % (x['t'] + 1, x['t'] + 1)]
        L += [pk('v_pk_fma_f32', x['U'], x['cU'], PA(x['tb']), x['U'], (None, 0, None)) for x in items]
        L += [pk('v_pk_fma_f32', x['t'], x['t'], PA(x['tb']), PA(x['tb']), (None, 1, 1)) for x in items]
        for x in items:
            L += ['v_rcp_f32 v%d, v%d' % (x['t'], x['t']), 'v_rcp_f32 v%d, v%d' % (x['t'] + 1, x['t'] + 1)]
        L += [pk('v_pk_mul_f32', x['U'], x['U'], x['G']) for x in items]
        L += [pk('v_pk_mul_f32', x['t'], x['t'], x['U']) for x in items]
        L += ['v_cvt_pk_bf16_f32 v%d, v%d, v%d' % (x['o'], x['t'], x['t'] + 1) for x in items]
        P.I('\n'.join(L))
        for n in range(len(grp)):
            o = items[4 * n]['o']
            P.I('v_permlane16_swap_b32 v%d, v%d\nv_permlane16_swap_b32 v%d, v%d' % (o, o + 2, o + 1, o + 3))
            if not nostore:
                pend.append('buffer_store_dwordx4 %s, v%d, s[16:19], s%d offen %s ;@def SP%d' % (v(o, 4), V_ST, 64 + b0 + n, aux, grp[n][0]))
        if EP['parts']:
            for p in range(2):
                if b0 + step == min(3 * (p + 1) + EP['lagf'], 9):
                    assert not any(('SP%d' % p) in x for x in pend)
                    P.I('\n'.join(part_flag(p)))
        if b0 + step > defer:
            for _ in range(2 * step):
                if pend:
                    P.I(pend.pop(0))
    for x in pend:
        P.I(x)


V_VP = 66
SEL = [96, 97, 98, 99]
ROWM, ROWR, LANE = [32, 92], [36, 100], [2, 40]


def att_rd(t):
    b = t & 1
    return ['ds_read_b64 %s, v6 offset:%d' % (v(LANE[b], 2), 128 * t),
            'ds_read_b128 %s, v15 offset:%d' % (v(ROWM[b], 4), 64 * t), 'ds_read_b128 %s, v15 offset:%d' % (v(ROWR[b], 4), 1024 + 64 * t)]


def att_pre():
    L = '''v_and_b32 v4, 15, v1
v_lshrrev_b32 v5, 4, v1
v_lshlrev_b32 v6, 3, v4
v_add_u32 v6, %d, v6
v_lshlrev_b32 v15, 4, v5
v_add_u32 v15, %d, v15''' % (L_PR, L_NM)
    L = L.split('\n') + att_rd(0)
    L += '''v_lshlrev_b32 v12, 4, v4
v_and_b32 v13, 1, v5
v_mul_u32_u24 v13, %d, v13
v_lshrrev_b32 v14, 5, v1
v_lshl_add_u32 v12, v14, 8, v12
v_add_u32 v11, v12, v13
v_and_b32 v12, 1, v1
v_lshl_add_u32 v5, v5, 2, v12
v_add_u32 v13, 2, v5
v_cmp_eq_u32 s[64:65], 1, v12
v_cmp_le_u32 s[66:67], v5, v4
v_cmp_le_u32 s[68:69], v13, v4
v_mov_b32 v12, 0x0c0c0100
v_mov_b32 v13, 0x01000c0c
v_mov_b32 v14, 0x0c0c0c0c
v_cndmask_b32 v12, v12, v13, s[64:65]
v_cndmask_b32 v96, v12, v14, s[66:67]
v_cndmask_b32 v98, v14, v12, s[66:67]
v_mov_b32 v12, 0x0c0c0302
v_mov_b32 v13, 0x03020c0c
v_cndmask_b32 v12, v12, v13, s[64:65]
v_cndmask_b32 v97, v12, v14, s[68:69]
v_cndmask_b32 v99, v14, v12, s[68:69]
v_mov_b32 v12, %s
v_mov_b32 v13, %s
v_mov_b32 v14, %s
s_cmp_eq_u32 s57, 0
s_cselect_b64 s[70:71], -1, 0
s_mul_i32 s60, s57, %d
s_lshl_b32 s61, s58, 2
s_add_u32 s61, s61, s56
s_lshl_b32 s61, s61, 9
s_add_u32 s77, s60, s61''' .replace('%d', '%d').__mod__((EP['tp'], fbits(0.25 * LOG2E), fbits(0.25 * LOG2E), fbits(-4e9), 12 * EP['tp'])).split('\n')
    return L


def weave(valu, mf, every=2):
    out, mf, run = [], list(mf), 0
    plain = lambda x: not (x.startswith('v_pk_') or x.startswith('s_') or x.startswith('buffer'))
    for i, x in enumerate(valu):
        out.append(x)
        if plain(x):
            run += 1
        if mf and run >= every and i + 1 < len(valu) and plain(valu[i + 1]):
            out.append(mf.pop(0))
            run = 0
    return out + mf


def att_epilogue4(P, aux, hoisted=True):
    TP = EP['tp']
    if not hoisted:
        P.I('\n'.join(att_pre()))
    if EP['parts']:
        P.I('\n'.join(tag_read()))
    for t in range(13):
        b = t & 1
        k, vv = att_acck(t), att_accv(t)
        L = []
        if t < 12:
            L += att_rd(t + 1) + ['s_waitcnt lgkmcnt(3)']
        mats = [(k, 24)] + ([(att_accq(t), 20)] if t >= 1 else [])
        for x, cs in mats:
            L += [pk('v_pk_fma_f32', x + 2 * h, cs + 2 * h, LANE[b], x + 2 * h, (None, 0, None)) for h in range(2)]
        L += [pk('v_pk_fma_f32', vv + 2 * h, ROWM[b] + 2 * h, 28, vv + 2 * h, (None, 0, None)) for h in range(2)]
        for x, cs in mats:
            L += [pk('v_pk_mul_f32', x + 2 * h, x + 2 * h, LANE[b], None, (None, 1)) for h in range(2)]
        L += [pk('v_pk_mul_f32', vv + 2 * h, vv + 2 * h, ROWR[b] + 2 * h) for h in range(2)]
        for x, cs in mats:
            L += ['v_cvt_pk_bf16_f32 v%d, v%d, v%d' % (x, x, x + 1), 'v_cvt_pk_bf16_f32 v%d, v%d, v%d' % (x + 1, x + 2, x + 3)]
        L += ['v_cvt_pk_bf16_f32 v%d, v%d, v%d' % (V_VP + 2 * t, vv, vv + 1), 'v_cvt_pk_bf16_f32 v%d, v%d, v%d' % (V_VP + 2 * t + 1, vv + 2, vv + 3)]
        P.I('\n'.join(L))
    pool = [att_accv(t) for t in range(13)] + [40, 44, 48]
    G = 4
    SP = lambda t: pool[8 * (((t - 1) // G) % 2) + 2 * ((t - 1) % G)]
    SO = lambda t: pool[8 * (((t - 1) // G) % 2) + 2 * ((t - 1) % G) + 1]
    tiles = lambda g: list(range(1 + G * g, 1 + G * g + G))

    def scores(g):
        L = []
        for t in tiles(g):
            q = att_accq(t)
            L.append('v_mfma_f32_16x16x16bf16_1k %s, %s, %s, 0' % (v(SP(t), 4), v(att_acck(t - 1), 2), v(q, 2)))
            L.append('v_mfma_f32_16x16x16bf16_1k %s, %s, %s, 0' % (v(SO(t), 4), v(att_acck(t), 2), v(q, 2)))
        return L

    def select(g):
        L = []
        S = {t: 20 + 4 * i for i, t in enumerate(tiles(g))}
        for t in tiles(g):
            sp, so = SP(t), SO(t)
            L += ['v_cndmask_b32 v%d, v%d, v%d, s[64:65]' % (sp, sp, sp + 1), 'v_cndmask_b32 v%d, v%d, v%d, s[64:65]' % (sp + 2, sp + 2, sp + 3),
                  'v_cndmask_b32 v%d, v%d, v%d, s[64:65]' % (so, so, so + 1), 'v_cndmask_b32 v%d, v%d, v%d, s[64:65]' % (so + 2, so + 2, so + 3)]
            if t == 1:
                L += ['v_cndmask_b32 v%d, v%d, v14, s[70:71]' % (sp, sp), 'v_cndmask_b32 v%d, v%d, v14, s[70:71]' % (sp + 2, sp + 2)]
        for t in tiles(g):
            sp, so = SP(t), SO(t)
            L += ['v_cndmask_b32 v%d, v%d, v%d, s[66:67]' % (S[t], sp, so), 'v_cndmask_b32 v%d, v%d, v%d, s[68:69]' % (S[t] + 1, sp + 2, so + 2)]
        return L

    def soft(g):
        s = [20 + 4 * i for i in range(4)]
        m = [x + 2 for x in s]
        n = [x + 3 for x in s]
        L = ['v_max_f32 v%d, v%d, v%d' % (m[i], s[i], s[i] + 1) for i in range(4)]
        L += ['v_permlane16_swap_b32 v%d, v%d' % (m[0], m[1]), 'v_permlane16_swap_b32 v%d, v%d' % (m[2], m[3]),
              'v_max_f32 v%d, v%d, v%d' % (m[0], m[0], m[1]), 'v_max_f32 v%d, v%d, v%d' % (m[2], m[2], m[3]),
              'v_permlane32_swap_b32 v%d, v%d' % (m[0], m[2]), 'v_max_f32 v%d, v%d, v%d' % (m[0], m[0], m[2]),
              'v_mov_b32 v%d, v%d' % (m[2], m[0]), 'v_permlane32_swap_b32 v%d, v%d' % (m[0], m[2]),
              'v_mov_b32 v%d, v%d' % (m[1], m[0]), 'v_mov_b32 v%d, v%d' % (m[3], m[2]),
              'v_permlane16_swap_b32 v%d, v%d' % (m[0], m[1]), 'v_permlane16_swap_b32 v%d, v%d' % (m[2], m[3])]
        L += ['v_pk_add_f32 %s, %s, %s op_sel_hi:[1,0] neg_lo:[0,1] neg_hi:[0,1]' % (v(s[i], 2), v(s[i], 2), v(m[i], 2)) for i in range(4)]
        L += ['v_pk_mul_f32 %s, %s, v[12:13]' % (v(s[i], 2), v(s[i], 2)) for i in range(4)]
        for i in range(4):
            L += ['v_exp_f32 v%d, v%d' % (s[i], s[i]), 'v_exp_f32 v%d, v%d' % (s[i] + 1, s[i] + 1)]
        L += ['v_cvt_pk_bf16_f32 v%d, v%d, v%d' % (s[i], s[i], s[i] + 1) for i in range(4)]
        for i, t in enumerate(tiles(g)):
            pb = att_accq(t)
            L += ['v_perm_b32 v%d, v%d, v%d, v%d' % (pb + r, s[i], s[i], SEL[r]) for r in range(4)]
        return L

    def pv(g):
        L = []
        for t in tiles(g):
            pb = att_accq(t)
            L += ['v_mfma_f32_16x16x32_bf16 %s, %s, %s, 0' % (v(SO(t), 4), v(V_ONES, 4), v(pb, 4)),
                  'v_mfma_f32_16x16x32_bf16 %s, %s, %s, 0' % (v(SP(t), 4), v(V_VP + 2 * (t - 1), 4), v(pb, 4))]
        return L

    def fin(g):
        ts_ = tiles(g)
        L = ['v_rcp_f32 v%d, v%d' % (SO(t), SO(t)) for t in ts_]
        for t in ts_:
            L += ['v_pk_mul_f32 %s, %s, %s op_sel_hi:[1,0]' % (v(SP(t), 2), v(SP(t), 2), v(SO(t), 2)),
                  'v_pk_mul_f32 %s, %s, %s op_sel_hi:[1,0]' % (v(SP(t) + 2, 2), v(SP(t) + 2, 2), v(SO(t), 2))]
        for t in ts_:
            o = att_accq(t - ((t - 1) & 1)) + 2 * ((t - 1) & 1)
            L += ['v_cvt_pk_bf16_f32 v%d, v%d, v%d' % (o, SP(t), SP(t) + 1), 'v_cvt_pk_bf16_f32 v%d, v%d, v%d' % (o + 1, SP(t) + 2, SP(t) + 3)]
        return L

    def put(g):
        L = []
        for t in tiles(g)[::2]:
            o = att_accq(t)
            L += ['s_add_u32 s60, s77, %d' % ((t - 1) * TP), 'v_permlane16_swap_b32 v%d, v%d' % (o, o + 2), 'v_permlane16_swap_b32 v%d, v%d' % (o + 1, o + 3),
                  'buffer_store_dwordx4 %s, v%d, s[16:19], s60 offen %s ;@def SP%d' % (v(o, 4), V_ST, aux, g)]
        if EP['parts'] and g:
            L = part_flag(g - 1) + L
        return L
    seq = scores(0) + weave(select(0), scores(1)) + soft(0)
    seq += weave(select(1), pv(0)) + fin(0) + put(0) + weave(soft(1), scores(2))
    seq += weave(select(2), pv(1)) + fin(1) + put(1) + soft(2) + pv(2) + fin(2) + put(2)
    P.I('\n'.join(seq))
```

```python
from p1b import *
from p1e import TP, ACT_BYTES, fbits, LOG2E, C0, C1, V_ST
from p0 import wave_sum, rnd_bf16
import p2

ACT_OFF = 0x400000
STATS_OFF = 0x100000
FLAGS_OFF = 0x200000
SRD_AUX = 28
SRD_DBG = 32
L_NM, L_RS = 153600, 153600 + 1024
LDS_BYTES = 153600 + 2048
V_ONES = 16
SPIN_MAX = 40000


def srd_off(P, r, ptr, off, size):
    P.I('s_add_u32 s%d, s%d, 0x%x\ns_addc_u32 s%d, s%d, 0\ns_mov_b32 s%d, 0x%x\ns_mov_b32 s%d, 0x20000' % (r, ptr, off, r + 1, ptr + 1, r + 2, size, r + 3))


def store_addr_setup(P):
    P.I('''v_and_b32 v12, 15, v1
v_lshlrev_b32 v12, 4, v12
v_bfe_u32 v13, v1, 4, 1
v_mul_u32_u24 v13, %d, v13
v_lshrrev_b32 v14, 5, v1
v_lshl_add_u32 v12, v14, 8, v12
v_add_u32 v%d, v12, v13''' % (TP, V_ST))


XR0, XR1 = 16, 20
XF0, XF1 = 40, 48


def p0_loads(P, has_flag=True):
    P.I('''s_lshl_b32 s60, s2, 2
s_add_u32 s60, s60, s56
s_lshl_b32 s60, s60, 11
v_lshlrev_b32 v14, 4, v1
buffer_load_dwordx4 v[16:19], v14, s[4:7], s60 offen
buffer_load_dwordx4 v[20:23], v14, s[4:7], s60 offen offset:1024''')


def flag_offset(P, dst):
    P.I('s_mul_i32 s%d, s57, 23\ns_add_u32 s%d, s%d, s58\ns_lshl_b32 s%d, s%d, 7\ns_lshl_b32 s63, s56, 2\ns_add_u32 s%d, s%d, s63\ns_add_u32 s%d, s%d, 0x%x' % ((dst,) * 9 + (FLAGS_OFF - STATS_OFF,)))


def flag_store(P, val, data=24):
    d, z = (24, 25) if data == 24 else (11, 12)
    P.I('v_mov_b32 v%d, %d\nv_mov_b32 v%d, 0\ns_mov_b64 exec, 1' % (d, val, z))
    P.I('buffer_store_dword v%d, v%d, s[28:31], s62 offen sc0 sc1 ;@def FL' % (d, z))
    P.I('s_mov_b64 exec, -1')


def p0_stats(P):
    X, F, S, Q, T = [XR0, XR1], [XF0, XF1], [30, 31], [32, 33], [34, 35]
    for i in range(2):
        for d in range(4):
            P.I('v_lshlrev_b32 v%d, 16, v%d\nv_and_b32 v%d, 0xffff0000, v%d' % (F[i] + 2 * d, X[i] + d, F[i] + 2 * d + 1, X[i] + d))
        P.I('v_add_f32 v%d, v%d, v%d' % (S[i], F[i], F[i] + 1))
        for d in range(2, 8):
            P.I('v_add_f32 v%d, v%d, v%d' % (S[i], S[i], F[i] + d))
    wave_sum(P, S, T)
    for i in range(2):
        P.I('v_mul_f32 v%d, 0x3b000000, v%d' % (S[i], S[i]))
    for d in range(8):
        for i in range(2):
            P.I('v_sub_f32 v%d, v%d, v%d' % (T[i], F[i] + d, S[i]))
        for i in range(2):
            P.I(('v_mul_f32 v%d, v%d, v%d' if d == 0 else 'v_fmac_f32 v%d, v%d, v%d') % (Q[i], T[i], T[i]))
    wave_sum(P, Q, T)
    steps = ['v_mul_f32 v%(q)d, 0x3b000000, v%(q)d', 'v_cvt_pk_bf16_f32 v%(q)d, v%(q)d, v%(q)d', 'v_lshlrev_b32 v%(q)d, 16, v%(q)d',
             'v_add_f32 v%%(q)d, %s, v%%(q)d' % fbits(1e-5), 'v_cvt_pk_bf16_f32 v%(q)d, v%(q)d, v%(q)d', 'v_lshlrev_b32 v%(q)d, 16, v%(q)d',
             'v_sqrt_f32 v%(q)d, v%(q)d', 'v_cvt_pk_bf16_f32 v%(s)d, v%(s)d, v%(s)d', 'v_cvt_pk_bf16_f32 v%(q)d, v%(q)d, v%(q)d',
             'v_lshlrev_b32 v%(s)d, 16, v%(s)d', 'v_lshlrev_b32 v%(q)d, 16, v%(q)d']
    for st in steps:
        for i in range(2):
            P.I(st % dict(q=Q[i], s=S[i]))
    P.I('s_lshl_b32 s60, s2, 7\ns_lshl_b32 s61, s56, 3\ns_add_u32 s60, s60, s61\nv_mov_b32 v25, 0\ns_mov_b64 exec, 1')
    P.I('buffer_store_dwordx2 v[30:31], v25, s[28:31], s60 offen sc0 sc1')
    P.I('buffer_store_dwordx2 v[32:33], v25, s[28:31], s60 offen offset:32 sc0 sc1')
    P.I('s_mov_b64 exec, -1')


def arrive(P):
    P.I('s_and_b32 s60, s2, 63\ns_lshl_b32 s60, s60, 2\ns_cmp_eq_u32 s56, 0\ns_cselect_b32 s60, s60, 0x%x' % HUGE)
    P.I('v_mov_b32 v24, 1\nv_mov_b32 v25, 0\ns_mov_b64 exec, 1')
    P.I('buffer_atomic_add v24, v25, s[32:35], s60 offen sc1')
    P.I('s_mov_b64 exec, -1')


def counter_load(P):
    P.I('v_lshlrev_b32 v26, 2, v1\ns_cmp_eq_u32 s56, 0\ns_cselect_b32 s72, 0, 0x%x\ns_cselect_b32 s85, 4, 0' % HUGE)
    P.I('buffer_load_dword v27, v26, s[32:35], s72 offen sc1')


def counter_wait(P, tag):
    P.I('v_cmp_gt_u32 vcc, s85, v27\ns_mov_b32 s61, 0')
    P.I('s_cbranch_vccz L_cok%s' % tag)
    P.cond_begin()
    P.I('L_cspin%s:' % tag)
    P.I('s_sleep 4\nbuffer_load_dword v27, v26, s[32:35], s72 offen sc1\ns_add_u32 s61, s61, 1\ns_waitcnt vmcnt(0)')
    P.I('v_cmp_gt_u32 vcc, s85, v27\ns_cmp_ge_u32 s61, %d\ns_cbranch_scc1 L_cok%s\ns_nop 2\ns_cbranch_vccnz L_cspin%s' % (SPIN_MAX, tag, tag))
    P.cond_end()
    P.I('L_cok%s:' % tag)


def stats_load(P):
    P.I('''s_mul_i32 s60, s57, 24
s_sub_u32 s60, s60, 2
v_lshrrev_b32 v26, 1, v1
v_add_u32 v26, s60, v26
v_max_i32 v26, 0, v26
v_min_u32 v26, 0xff, v26
v_lshlrev_b32 v26, 7, v26
v_and_b32 v27, 1, v1
v_lshl_add_u32 v26, v27, 4, v26
s_and_b32 s61, s56, 1
s_lshl_b32 s61, s61, 5
buffer_load_dwordx4 v[28:31], v26, s[28:31], s61 offen sc0 sc1''')


def stats_to_lds(P):
    P.I('s_and_b32 s61, s56, 1\ns_cmp_eq_u32 s61, 1\ns_cselect_b64 s[62:63], -1, 0\ns_lshl_b32 s61, s61, 10\ns_add_u32 s61, s61, %d' % L_NM)
    for r in range(4):
        P.I('v_rcp_f32 v%d, v%d' % (32 + r, 28 + r))
    for r in range(4):
        P.I('v_xor_b32 v%d, 0x80000000, v%d' % (28 + r, 28 + r))
    for r in range(4):
        P.I('v_cndmask_b32 v%d, v%d, v%d, s[62:63]' % (28 + r, 28 + r, 32 + r))
    P.I('v_lshl_add_u32 v26, v1, 4, s61\nds_write_b128 v26, v[28:31]\ns_waitcnt lgkmcnt(0)')


def w2_l2_prefetch(P):
    P.I('''s_lshr_b32 s60, s2, 3
s_mul_i32 s60, s60, 59
v_add_u32 v36, s60, v1
v_cmp_gt_u32 vcc, 59, v1
v_mov_b32 v37, 0x%x
v_subrev_u32 v38, 512, v36
v_lshlrev_b32 v36, 10, v36
v_lshlrev_b32 v38, 10, v38
v_cndmask_b32 v36, v37, v36, vcc
v_cndmask_b32 v38, v37, v38, vcc
v_min_u32 v38, v37, v38
s_lshl_b32 s61, s56, 8''' % HUGE)
    srd(P, 8, 40, 0x80000)
    srd(P, 12, 48, 0x158000)
    for i in range(2):
        P.I('buffer_load_dword v9, v36, s[8:11], s61 offen offset:%d' % (128 * i))
        P.I('buffer_load_dword v9, v38, s[12:15], s61 offen offset:%d' % (128 * i))


def w2_l2_prefetch84(P):
    P.I('''s_lshr_b32 s60, s2, 3
s_mul_i32 s60, s60, 59
v_add_u32 v60, s60, v1
v_cmp_gt_u32 vcc, 59, v1
v_mov_b32 v61, 0x%x
v_subrev_u32 v62, 512, v60
v_lshlrev_b32 v60, 10, v60
v_lshlrev_b32 v62, 10, v62
v_cndmask_b32 v60, v61, v60, vcc
v_cndmask_b32 v62, v61, v62, vcc
v_min_u32 v62, v61, v62
s_and_b32 s61, s2, 1
s_lshl_b32 s61, s61, 2
s_add_u32 s61, s61, s56
s_lshl_b32 s61, s61, 7''' % HUGE)
    srd(P, 20, 40, 0x80000)
    P.I('buffer_load_dword v49, v60, s[20:23], s61 offen')
    srd(P, 20, 48, 0x158000)
    P.I('buffer_load_dword v49, v62, s[20:23], s61 offen')


def w2_first_touch(P):
    P.I('''s_lshl_b32 s60, s2, 2
s_add_u32 s60, s60, s56
s_mul_i32 s60, s60, 15
v_add_u32 v26, s60, v1
v_cmp_gt_u32 vcc, 15, v1
v_mov_b32 v27, 0x%x
v_subrev_u32 v28, 4096, v26
v_lshlrev_b32 v26, 7, v26
v_lshlrev_b32 v28, 7, v28
v_cndmask_b32 v26, v27, v26, vcc
v_cndmask_b32 v28, v27, v28, vcc
v_min_u32 v28, v27, v28''' % HUGE)
    srd(P, 20, 40, 0x80000)
    srd(P, 24, 48, 0x158000)
    P.I('buffer_load_dword v9, v26, s[20:23], 0 offen\nbuffer_load_dword v9, v28, s[24:27], 0 offen')


def w1_first_touch(P):
    P.I('''s_lshl_b32 s60, s2, 2
s_add_u32 s60, s60, s56
s_mul_i32 s60, s60, 12
v_add_u32 v26, s60, v1
v_cmp_gt_u32 vcc, 12, v1
v_mov_b32 v27, 0x%x
v_lshlrev_b32 v26, 7, v26
v_cndmask_b32 v26, v27, v26, vcc''' % HUGE)
    srd(P, 20, 38, 0x180000)
    P.I('buffer_load_dword v9, v26, s[20:23], 0 offen')
    srd(P, 20, 44, 0x158000)
    P.I('buffer_load_dword v9, v26, s[20:23], 0 offen')
    srd(P, 20, 46, 0x158000)
    P.I('buffer_load_dword v9, v26, s[20:23], 0 offen')


def prewrite_setup(P, role):
    P.I('''v_and_b32 v41, 15, v1
v_lshlrev_b32 v41, 4, v41
v_bfe_u32 v42, v1, 4, 1
v_mul_u32_u24 v42, %d, v42
v_lshrrev_b32 v43, 5, v1
v_lshl_add_u32 v41, v43, 8, v41
v_add_u32 v40, v41, v42
v_mov_b32 v44, -1
v_mov_b32 v45, -1
v_mov_b32 v46, -1
v_mov_b32 v47, -1''' % TP)
    if role == 'ffn':
        P.I('''s_lshr_b32 s60, s56, 1
s_mul_i32 s60, s60, 6
s_mul_i32 s61, s57, 12
s_add_u32 s60, s60, s61
s_mul_i32 s78, s60, %d
s_and_b32 s60, s56, 1
s_mul_i32 s60, s60, 3
s_mul_i32 s61, s58, 6
s_add_u32 s60, s60, s61
s_sub_u32 s77, s60, 16''' % TP)
    else:
        P.I('''s_mul_i32 s60, s57, %d
s_lshl_b32 s61, s58, 2
s_add_u32 s61, s61, s56
s_lshl_b32 s61, s61, 9
s_add_u32 s78, s60, s61''' % (12 * TP))


def prewrite(P, role, part, aux):
    if role == 'ffn':
        P.I('s_add_u32 s60, s77, %d\ns_cmp_lt_u32 s60, 118\ns_cselect_b32 s61, s78, 0x%x\ns_lshl_b32 s60, s60, 9\ns_add_u32 s61, s61, s60' % (part, HUGE))
        for bp in range(3):
            P.I('s_add_u32 s60, s61, %d\nbuffer_store_dwordx4 v[44:47], v40, s[16:19], s60 offen %s' % (2 * bp * TP, aux))
    else:
        for q in range(2):
            P.I('s_add_u32 s60, s78, %d\nbuffer_store_dwordx4 v[44:47], v40, s[16:19], s60 offen %s' % ((4 * part + 2 * q) * TP, aux))


def flags_poll(P):
    P.I('''s_mul_i32 s60, s%d, 21846
s_lshr_b32 s60, s60, 16
s_mul_i32 s60, s60, %d
s_add_u32 s60, s60, 0x%x
v_min_u32 v26, 22, v1
v_lshlrev_b32 v26, 7, v26
s_mov_b32 s61, 0''' % (p2.S_TB2, 23 * 128, FLAGS_OFF - STATS_OFF))
    P.I('L_fspin:')
    P.I('buffer_load_dwordx4 v[28:31], v26, s[28:31], s60 offen sc0 sc1\ns_add_u32 s61, s61, 1\ns_waitcnt vmcnt(0)')
    P.I('v_and_b32 v28, v28, v29\nv_and_b32 v30, v30, v31\nv_and_b32 v28, v28, v30\nv_cmp_ne_u32 vcc, 1, v28')
    P.I('s_cmp_ge_u32 s61, %d\ns_cbranch_scc1 L_fok\ns_nop 2\ns_cbranch_vccz L_fok\ns_sleep 1\ns_branch L_fspin' % SPIN_MAX)
    P.I('L_fok:')


def cs_ffn(a_):
    return 20 + 4 * a_ if a_ < 4 else 248 + 4 * (a_ - 4)


def ones_setup(P):
    for r in range(4):
        P.I('v_mov_b32 v%d, 0x3f803f80' % (V_ONES + r))


def extra_ffn(kk, a_, A):
    return [mfma(cs_ffn(a_), A, V_ONES, kk == 0)]


def extra_att(kk, t, wb):
    if t == 1:
        return [mfma(24, wb + 4, V_ONES, kk == 0)]
    if t == 2:
        return [mfma(28, V_ONES, wb + 8, kk == 0)]
    if t == 3:
        return [mfma(20, wb, V_ONES, kk == 0)]
    return []


def bc(pair_reg, idx):
    return v(pair_reg, 2), idx


def pk(op, d, a_, b_, c_=None, bsel=(None, None, None)):
    srcs = [a_, b_] + ([c_] if c_ is not None else [])
    lo = [0 if bsel[i] is None else bsel[i] for i in range(len(srcs))]
    hi = [1 if bsel[i] is None else bsel[i] for i in range(len(srcs))]
    t = '%s %s, %s' % (op, v(d, 2), ', '.join(x if isinstance(x, str) else v(x, 2) for x in srcs))
    if any(lo):
        t += ' op_sel:[%s]' % ','.join(map(str, lo))
    if not all(hi):
        t += ' op_sel_hi:[%s]' % ','.join(map(str, hi))
    return t


def ffn_epilogue2(P, aux, defer=0):
    PA = lambda b: 40 + 4 * b
    PB = lambda b: 42 + 4 * b
    P.I('v_and_b32 v12, 15, v1\nv_lshlrev_b32 v12, 2, v12\ns_lshr_b32 s60, s56, 1\ns_mul_i32 s60, s60, 384\ns_add_u32 s60, s60, %d\nv_add_u32 v12, s60, v12' % (L_NM + 64))
    for b in range(6):
        P.I('ds_read_b32 v%d, v12 offset:%d\nds_read_b32 v%d, v12 offset:%d' % (PA(b), 64 * b, PB(b), 1024 + 64 * b))
    store_addr_setup(P)
    P.I('''s_lshr_b32 s60, s56, 1
s_mul_i32 s60, s60, 6
s_mul_i32 s61, s57, 12
s_add_u32 s60, s60, s61
s_mul_i32 s78, s60, %d
s_and_b32 s60, s56, 1
s_mul_i32 s60, s60, 3
s_mul_i32 s61, s58, 6
s_add_u32 s60, s60, s61
s_sub_u32 s76, s60, 16''' % TP)
    for b in range(6):
        P.I('v_mul_f32 v%d, v%d, v%d' % (PA(b) + 1, PB(b), PB(b)))
    for b in range(6):
        P.I('v_mul_f32 v%d, v%d, v%d' % (PB(b) + 1, PA(b) + 1, PB(b)))
    for b in range(6):
        P.I('v_rcp_f32 v%d, v%d' % (PA(b) + 1, PA(b) + 1))
    for b in range(6):
        P.I('v_mul_f32 v%d, %s, v%d\nv_mul_f32 v%d, %s, v%d' % (PB(b), fbits(C0), PB(b), PB(b) + 1, fbits(C1), PB(b) + 1))
    T = 64
    blk = 0
    pend = []
    for uu in range(3):
        P.I('s_add_u32 s60, s76, %d\ns_cmp_lt_u32 s60, 118\ns_cselect_b32 s61, s78, 0x%x\ns_lshl_b32 s60, s60, 9\ns_add_u32 s77, s61, s60' % (uu, HUGE))
        for bp in range(3):
            tb = [2 * bp + (q >> 1) for q in range(4)]
            G = [ffn_acc(2 * uu, tb[q]) + 2 * (q & 1) for q in range(4)]
            U = [ffn_acc(2 * uu + 1, tb[q]) + 2 * (q & 1) for q in range(4)]
            cG = [cs_ffn(2 * uu) + 2 * (q & 1) for q in range(4)]
            cU = [cs_ffn(2 * uu + 1) + 2 * (q & 1) for q in range(4)]
            t = [T + 8 * (blk % 2) + 2 * q for q in range(4)]
            o = G[0]
            R = range(4)
            L = []
            L += [pk('v_pk_fma_f32', G[q], cG[q], PA(tb[q]), G[q], (None, 0, None)) for q in R]
            L += [pk('v_pk_fma_f32', U[q], cU[q], PA(tb[q]), U[q], (None, 0, None)) for q in R]
            L += [pk('v_pk_mul_f32', t[q], G[q], G[q]) for q in R]
            L += [pk('v_pk_fma_f32', t[q], t[q], PB(tb[q]), PB(tb[q]), (None, 1, 0)) for q in R]
            L += [pk('v_pk_mul_f32', t[q], t[q], G[q]) for q in R]
            for q in R:
                L += ['v_exp_f32 v%d, v%d' % (t[q], t[q]), 'v_exp_f32 v%d, v%d' % (t[q] + 1, t[q] + 1)]
            L += [pk('v_pk_fma_f32', t[q], t[q], PA(tb[q]), PA(tb[q]), (None, 1, 1)) for q in R]
            for q in R:
                L += ['v_rcp_f32 v%d, v%d' % (t[q], t[q]), 'v_rcp_f32 v%d, v%d' % (t[q] + 1, t[q] + 1)]
            L += [pk('v_pk_mul_f32', t[q], t[q], G[q]) for q in R]
            L += [pk('v_pk_mul_f32', t[q], t[q], U[q]) for q in R]
            L += ['v_cvt_pk_bf16_f32 v%d, v%d, v%d' % (o + q, t[q], t[q] + 1) for q in R]
            P.I('\n'.join(L))
            P.I('s_add_u32 s%d, s77, %d' % (64 + blk, 2 * bp * TP))
            P.I('v_permlane16_swap_b32 v%d, v%d\nv_permlane16_swap_b32 v%d, v%d' % (o, o + 2, o + 1, o + 3))
            pend.append('buffer_store_dwordx4 %s, v%d, s[16:19], s%d offen %s' % (v(o, 4), V_ST, 64 + blk, aux))
            blk += 1
            if blk > defer:
                for _ in range(2):
                    if pend:
                        P.I(pend.pop(0))
    for x in pend:
        P.I(x)


V_VP = 66
V_MP0, V_MP1, V_MO0, V_MO1 = 96, 97, 98, 99


def att_epilogue2(P, aux):
    ROWM, ROWR, LANE = [32, 92], [36, 100], [64, 2]
    P.I('v_and_b32 v4, 15, v1\nv_lshrrev_b32 v5, 4, v1\nv_lshlrev_b32 v6, 2, v4\nv_add_u32 v6, %d, v6\nv_lshlrev_b32 v7, 4, v5\nv_add_u32 v7, %d, v7' % (L_NM, L_NM))

    def rd(t):
        b = t & 1
        return ['ds_read_b32 v%d, v6 offset:%d' % (LANE[b], 64 * t), 'ds_read_b32 v%d, v6 offset:%d' % (LANE[b] + 1, 1024 + 64 * t),
                'ds_read_b128 %s, v7 offset:%d' % (v(ROWM[b], 4), 64 * t), 'ds_read_b128 %s, v7 offset:%d' % (v(ROWR[b], 4), 1024 + 64 * t)]
    P.I('\n'.join(rd(0)))
    store_addr_setup(P)
    P.I('''v_and_b32 v8, 1, v1
v_lshl_add_u32 v5, v5, 2, v8
v_add_u32 v9, 2, v5
v_cmp_eq_u32 s[64:65], 1, v8
v_cmp_le_u32 s[66:67], v5, v4
v_cmp_le_u32 s[68:69], v9, v4
v_mov_b32 v8, 0xffff
v_mov_b32 v9, 0xffff0000
v_cndmask_b32 v8, v8, v9, s[64:65]
v_cndmask_b32 v98, 0, v8, s[66:67]
v_cndmask_b32 v99, 0, v8, s[68:69]
v_xor_b32 v96, v98, v8
v_xor_b32 v97, v99, v8
v_mov_b32 v12, %s
v_mov_b32 v13, %s
v_mov_b32 v14, %s
s_cmp_eq_u32 s57, 0
s_cselect_b64 s[70:71], -1, 0
s_mul_i32 s60, s57, %d
s_lshl_b32 s61, s58, 2
s_add_u32 s61, s61, s56
s_lshl_b32 s61, s61, 9
s_add_u32 s77, s60, s61''' % (fbits(0.25 * LOG2E), fbits(0.25 * LOG2E), fbits(-4e9), 12 * TP))
    for t in range(13):
        b = t & 1
        k, vv = att_acck(t), att_accv(t)
        L = []
        if t < 12:
            L += rd(t + 1)
        mats = [(k, 24)] + ([(att_accq(t), 20)] if t >= 1 else [])
        for x, cs in mats:
            L += [pk('v_pk_fma_f32', x + 2 * h, cs + 2 * h, LANE[b], x + 2 * h, (None, 0, None)) for h in range(2)]
        L += [pk('v_pk_fma_f32', vv + 2 * h, ROWM[b] + 2 * h, 28, vv + 2 * h, (None, 0, None)) for h in range(2)]
        for x, cs in mats:
            L += [pk('v_pk_mul_f32', x + 2 * h, x + 2 * h, LANE[b], None, (None, 1)) for h in range(2)]
        L += [pk('v_pk_mul_f32', vv + 2 * h, vv + 2 * h, ROWR[b] + 2 * h) for h in range(2)]
        for x, cs in mats:
            L += ['v_cvt_pk_bf16_f32 v%d, v%d, v%d' % (x, x, x + 1), 'v_cvt_pk_bf16_f32 v%d, v%d, v%d' % (x + 1, x + 2, x + 3)]
        L += ['v_cvt_pk_bf16_f32 v%d, v%d, v%d' % (V_VP + 2 * t, vv, vv + 1), 'v_cvt_pk_bf16_f32 v%d, v%d, v%d' % (V_VP + 2 * t + 1, vv + 2, vv + 3)]
        P.I('\n'.join(L))
    pool = [att_accv(t) for t in range(13)] + [40, 44, 48]
    G = 4
    SP = lambda t: pool[8 * (((t - 1) // G) % 2) + 2 * ((t - 1) % G)]
    SO = lambda t: pool[8 * (((t - 1) // G) % 2) + 2 * ((t - 1) % G) + 1]

    def scores(t0):
        L = []
        for t in range(t0, t0 + G):
            q = att_accq(t)
            L.append('v_mfma_f32_16x16x16bf16_1k %s, %s, %s, 0' % (v(SP(t), 4), v(att_acck(t - 1), 2), v(q, 2)))
            L.append('v_mfma_f32_16x16x16bf16_1k %s, %s, %s, 0' % (v(SO(t), 4), v(att_acck(t), 2), v(q, 2)))
        return L
    P.I('\n'.join(scores(1) + scores(1 + G)))
    for t0 in range(1, 13, G):
        ts_ = list(range(t0, t0 + G))
        S = {t: 20 + 4 * (t - t0) for t in ts_}
        L = []
        for t in ts_:
            sp, so = SP(t), SO(t)
            L += ['v_cndmask_b32 v%d, v%d, v%d, s[64:65]' % (sp, sp, sp + 1),
                  'v_cndmask_b32 v%d, v%d, v%d, s[64:65]' % (sp + 2, sp + 2, sp + 3),
                  'v_cndmask_b32 v%d, v%d, v%d, s[64:65]' % (so, so, so + 1),
                  'v_cndmask_b32 v%d, v%d, v%d, s[64:65]' % (so + 2, so + 2, so + 3)]
            if t == 1:
                L += ['v_cndmask_b32 v%d, v%d, v14, s[70:71]' % (sp, sp),
                      'v_cndmask_b32 v%d, v%d, v14, s[70:71]' % (sp + 2, sp + 2)]
        for t in ts_:
            sp, so = SP(t), SO(t)
            L += ['v_cndmask_b32 v%d, v%d, v%d, s[66:67]' % (S[t], sp, so),
                  'v_cndmask_b32 v%d, v%d, v%d, s[68:69]' % (S[t] + 1, sp + 2, so + 2)]
        L += ['v_max_f32 v%d, v%d, v%d' % (S[t] + 2, S[t], S[t] + 1) for t in ts_]
        for sw in ('v_permlane16_swap_b32', 'v_permlane32_swap_b32'):
            L += ['v_mov_b32 v%d, v%d' % (S[t] + 3, S[t] + 2) for t in ts_]
            L += ['%s v%d, v%d' % (sw, S[t] + 2, S[t] + 3) for t in ts_]
            L += ['v_max_f32 v%d, v%d, v%d' % (S[t] + 2, S[t] + 2, S[t] + 3) for t in ts_]
        L += ['v_pk_add_f32 %s, %s, %s op_sel_hi:[1,0] neg_lo:[0,1] neg_hi:[0,1]' % (v(S[t], 2), v(S[t], 2), v(S[t] + 2, 2)) for t in ts_]
        L += ['v_pk_mul_f32 %s, %s, v[12:13]' % (v(S[t], 2), v(S[t], 2)) for t in ts_]
        for t in ts_:
            L += ['v_exp_f32 v%d, v%d' % (S[t], S[t]), 'v_exp_f32 v%d, v%d' % (S[t] + 1, S[t] + 1)]
        for t in ts_:
            L += ['v_cvt_pk_bf16_f32 v%d, v%d, v%d' % (S[t], S[t], S[t]), 'v_cvt_pk_bf16_f32 v%d, v%d, v%d' % (S[t] + 1, S[t] + 1, S[t] + 1)]
        for t in ts_:
            pb = att_accq(t)
            L += ['v_and_b32 v%d, v%d, v%d' % (pb, S[t], V_MP0), 'v_and_b32 v%d, v%d, v%d' % (pb + 1, S[t] + 1, V_MP1),
                  'v_and_b32 v%d, v%d, v%d' % (pb + 2, S[t], V_MO0), 'v_and_b32 v%d, v%d, v%d' % (pb + 3, S[t] + 1, V_MO1)]
        for t in ts_:
            pb = att_accq(t)
            L += ['v_mfma_f32_16x16x32_bf16 %s, %s, %s, 0' % (v(SO(t), 4), v(V_ONES, 4), v(pb, 4)),
                  'v_mfma_f32_16x16x32_bf16 %s, %s, %s, 0' % (v(SP(t), 4), v(V_VP + 2 * (t - 1), 4), v(pb, 4))]
        L += ['v_rcp_f32 v%d, v%d' % (SO(t), SO(t)) for t in ts_]
        for t in ts_:
            L += ['v_pk_mul_f32 %s, %s, %s op_sel_hi:[1,0]' % (v(SP(t), 2), v(SP(t), 2), v(SO(t), 2)),
                  'v_pk_mul_f32 %s, %s, %s op_sel_hi:[1,0]' % (v(SP(t) + 2, 2), v(SP(t) + 2, 2), v(SO(t), 2))]
        for t in ts_:
            o = att_accq(t - ((t - 1) & 1)) + 2 * ((t - 1) & 1)
            L += ['v_cvt_pk_bf16_f32 v%d, v%d, v%d' % (o, SP(t), SP(t) + 1), 'v_cvt_pk_bf16_f32 v%d, v%d, v%d' % (o + 1, SP(t) + 2, SP(t) + 3)]
        if t0 == 1:
            L += scores(1 + 2 * G)
        for t in ts_[::2]:
            o = att_accq(t)
            L += ['s_add_u32 s60, s77, %d' % ((t - 1) * TP),
                  'v_permlane16_swap_b32 v%d, v%d' % (o, o + 2), 'v_permlane16_swap_b32 v%d, v%d' % (o + 1, o + 3),
                  'buffer_store_dwordx4 %s, v%d, s[16:19], s60 offen %s' % (v(o, 4), V_ST, aux)]
        P.I('\n'.join(L))
```

```python
import sys, re
from p1c import *
import nz
import ld, p2, p2b, p2c, duty
from gen_f import NAME, HEADER, kd, head, TS

OPT = dict(split=8, st_aux='sc0 sc1', ld_aux='sc1', out_aux='', defer=2, cs=5, map2='8x4', pre_flag=0, nocs=False,
           p2alt=True, lpoll=False, depth=3, xearly=3, order='xw', early_stats=False, p2twice=False, sched=1, barts=None, w2pf=True, epi=2, sp0=8, ct=0, tailsync=True, xpos=0, xfirst=False, perm=None, pd=2, prio=1, smap=True, early=3, flagfirst=True, mid=6, rot=None, tailw=True, nobar=False, ep4=True, ew=4, touch=None, c0skip=0, wt=None, cheapcs=True, xm=0, attd=3, halo=True, zl=True, pfc=6, back=0, tsrole=False)


def build(timing=False, **kw):
    o = dict(OPT)
    o.update(kw)
    AUX['rot'] = o['rot']
    import ep4
    ep4.EP.update(tp=TP, parts=False)
    AUX['alt'] = o['order']
    p2c.DEPTH[0] = o['depth']
    p2c.SCHED[0] = o['sched']
    p2c.XEARLY[0] = o['xearly']
    AUX['barts'] = o['barts']
    AUX['xm'] = o['xm']
    AUX['zl'] = o['zl']
    p2c.ALT[0] = o['p2alt']
    p2c.SMAP[0] = o['smap']
    p2c.TAILW[0] = o['tailw'] and o['smap']
    duty.ROT[0] = o['rot'] or [0] * 8
    duty.PERM[0] = o['perm'] or list(range(8))
    kn = NAME + '_kernel'
    P = Prog()
    ts = TS(timing)
    if o['barts']:
        ts.NAMES = ['c0'] + ['x%d' % i for i in range(8)] + ['main', 'epi', 'x']
    P.I(kn + ':')
    ts.start(P)
    P.I('s_load_dwordx16 s[36:51], s[0:1], 0\ns_load_dwordx4 s[52:55], s[0:1], 64')
    P.I('s_cmp_ge_u32 s2, 256\ns_cbranch_scc1 L_end')
    table_load(P)
    wave_split(P)
    P.I('s_cmp_ge_u32 s79, 4\ns_cbranch_scc1 L_loader')
    P.I('s_lshr_b32 s60, s2, 3\ns_lshl_b32 s60, s60, 2\ns_add_u32 s60, s60, s56\ns_lshl_b32 s60, s60, 9\nv_lshl_add_u32 v11, v1, 3, s60')
    P.I('v_min_u32 v11, L_code_end-L_pfpc-8, v11\nv_and_b32 v11, -4, v11')
    if o['xfirst']:
        P.I('s_waitcnt lgkmcnt(0)')
        srd(P, SRD_X, 36, 2048 * 1024)
        x_rows(P)
        P.I('global_load_dwordx2 v[100:101], v11, s[84:85]')
    else:
        P.I('global_load_dwordx2 v[100:101], v11, s[84:85]')
        P.I('s_waitcnt lgkmcnt(0)')
        srd(P, SRD_X, 36, 2048 * 1024)
        x_rows(P)
    P.I('s_branch L_compute')
    P.new_path()
    P.I('L_loader:')
    lane_patterns(P)
    P.I('s_waitcnt lgkmcnt(0)')
    ts.save_start(P)
    table_decode(P)
    P.I('s_bitcmp1_b32 s59, 7\ns_cbranch_scc1 L_lidle')
    P.I('s_cmp_lt_u32 s58, 8\ns_cbranch_scc1 L_latt0')
    sp = o['split']

    def first(role):
        if o['order'] == 'wx':
            w_setup(P, role)
            ts(P, 'setup')
            issue(P, role, 0, 0, 3)
            x_setup(P, role)
        else:
            x_setup(P, role)
            rot_x(P)
            ts(P, 'setup')
            issue(P, role, 0, 0, 3)
            w_setup(P, role)
            rot_w(P, role)
            zero_light(P, role)
        issue(P, role, 0, 3, 99)
        ts(P, 'issued')
        issue(P, role, 1, 0, o['sp0'])
        aux_setup(P)
        if o['c0skip']:
            P.I('s_waitcnt vmcnt(%d)' % (o['sp0'] + o['c0skip']))
        else:
            P.I('s_nop 0 ;@use C0')
        P.I('s_branch L_l%s' % role)
    first('ffn')
    P.new_path()
    P.I('L_latt0:')
    first('att')
    for role in ('ffn', 'att'):
        P.new_path()
        P.I('L_l%s:' % role)
        lag = 2 if o['tailsync'] else 1
        for c in range(8):
            if c:
                P.I('s_nop 0 ;@use C%d' % c)
            if c == 3 and o['nobar']:
                ready_clear(P)
            if c == o['ct'] + lag:
                tag_wait(P, role)
            if c == o['cs'] + lag:
                stats_check(P, role)
            if o['barts']:
                P.I('s_memtime s[80:81]\ns_waitcnt lgkmcnt(0)\ns_mov_b32 s%d, s80' % (86 + c))
            P.I('s_barrier')

            def sync_ops():
                if c == o['ct']:
                    tag_load(P)
                if c == o['ct'] + lag:
                    stats_publish(P, role)
                if c == o['cs']:
                    stats_fetch(P, role)
            if not o['tailsync']:
                sync_ops()
            if c + 1 < 8:
                issue(P, role, c + 1, sp if c else o['sp0'], 99)
            if c + 2 < 8:
                issue(P, role, c + 2, 0, sp)
            if o['tailsync']:
                sync_ops()
            if o['wt']:
                k0, lead = o['wt']
                if c == 0:
                    w_touch_setup(P, k0, 8 - k0)
                if k0 <= c + lead < 8:
                    w_touch(P, c + lead)
            if o['touch'] is not None and c == o['touch']:
                srd(P, 20, 50, 2048 * 1024)
                P.I('s_lshl_b32 s60, s2, 13\nv_mov_b32 v36, 0\ns_mov_b64 exec, 1\nbuffer_load_dword v37, v36, s[20:23], s60 offen\ns_mov_b64 exec, -1')
            if c == o['pfc'] and o['w2pf']:
                (w2_l2_prefetch84 if o['map2'] == '8x4' else w2_l2_prefetch)(P)
            if c == 7 and o['early']:
                p2b.decode(P, o['map2'])
                p2c.w_setup(P)
                p2c.late_w(P, 0, int(o['early']))
        if role == 'ffn':
            P.I('s_branch L_lw2')
    P.I('L_lw2:')
    if not o['early']:
        p2b.decode(P, o['map2'])
        p2c.w_setup(P)
    P.I('s_barrier')
    P.I('L_lw2b:')
    p2c.late_w(P, int(o['early']), p2.RING)
    ts(P, 'w2iss')
    P.I('s_waitcnt vmcnt(0)')
    if o['nobar']:
        P.I('s_lshl_b32 s60, s56, 2\ns_add_u32 s60, s60, %d\nv_mov_b32 v26, s60\nv_mov_b32 v27, 1\nds_write_b32 v26, v27\ns_waitcnt lgkmcnt(0)' % L_RDY)
    else:
        P.I('s_barrier')
    P.I('s_branch L_fin')
    P.new_path()
    P.I('L_lidle:')
    aux_setup(P)
    P.I('s_bitcmp1_b32 s59, 6\ns_cbranch_scc0 L_nopub\ns_cmp_lg_u32 s56, 0\ns_cbranch_scc1 L_nopub')
    P.cond_begin()
    publish_tag(P)
    P.cond_end()
    P.I('L_nopub:')
    ready_clear(P)
    tag_load(P)
    P.I('s_waitcnt vmcnt(0)')
    tag_wait(P, 'idle')
    P.I('s_barrier')
    stats_publish(P, 'idle')
    p2b.decode(P, o['map2'])
    p2c.w_setup(P)
    if o['early']:
        p2c.late_w(P, 0, int(o['early']))
    P.I('s_branch L_lw2b')
    P.new_path()
    P.I('L_compute:')
    ts.save_start(P)
    table_decode(P)
    P.I('s_waitcnt vmcnt(%d)' % (1 if o['xfirst'] else 0))
    srd_off(P, SRD_AUX, 54, STATS_OFF, 0x200000)
    srd_off(P, 16, 54, ACT_OFF, ACT_BYTES)
    stats_compute(P, [40, 44], [48, 56])
    P.I('s_bitcmp1_b32 s59, 7\ns_cbranch_scc1 L_cidle')
    P.I('s_cmp_lt_u32 s58, 8\ns_cbranch_scc1 L_catt')
    for role in ('ffn', 'att'):
        if role == 'att':
            P.new_path()
            P.I('L_catt:')
        frag_addr_setup(P, role)
        if o['cheapcs'] and role == 'ffn':
            ffn_addr_extra(P)
        ones_setup(P)
        P.I('s_waitcnt vmcnt(0)')
        if o['prio']:
            P.I('s_setprio %d' % o['prio'])
        if o['cheapcs']:
            assert o['ep4'] and o['ew'] == 4
            if role == 'ffn':
                ffn_compute3(P, lambda P, n: ts(P, 'c0'), ffn_pre())
            else:
                att_compute3(P, lambda P, n: ts(P, 'c0'), att_pre(), o['attd'], o['halo'])
        elif role == 'ffn' and o['pd'] == 3:
            ffn_compute2(P, lambda P, n: ts(P, 'c0'), None if o['nocs'] else extra_ffn, True, 3)
        else:
            (ffn_compute if role == 'ffn' else att_compute)(P, lambda P, n: ts(P, 'c0'), None if o['nocs'] else (extra_ffn if role == 'ffn' else extra_att), True, ((ffn_pre() if role == 'ffn' else att_pre()) if o['ep4'] else None))
        ts(P, 'w2iss' if (o['tsrole'] and role == 'att') else 'main')
        if o['ep4']:
            if role == 'ffn':
                ffn_epilogue4(P, o['st_aux'], o['defer'], True, o['ew'], cs_rest=ffn_cs_rest if o['cheapcs'] else None)
            else:
                att_epilogue4(P, o['st_aux'])
        elif role == 'ffn':
            ffn_epilogue2(P, o['st_aux'], o['defer'])
        else:
            att_epilogue2(P, o['st_aux'])
        ts(P, 'polled' if (o['tsrole'] and role == 'att') else 'epi')
        if role == 'ffn':
            P.I('s_branch L_cflag')
    P.I('L_cflag:')
    flag_offset(P, 62)
    P.I('s_mov_b32 s71, s62')
    P.I('L_cp2:')
    p2b.decode(P, o['map2'])
    if o['xpos'] == 0:
        p2b.x_setup(P)
        p2c.x_early(P)
    p2c.w_setup(P)
    p2c.a_addr_setup(P)
    if o['nobar']:
        P.I('v_mov_b32 v12, %d\nds_read_b32 v12, v12' % L_TAG)
        p2c.b_setup(P)
        srd(P, 8, 50, 2048 * 1024)
        P.I('v_readfirstlane_b32 s%d, v12' % S_TAG)
        ready_wait(P, SPIN_MAX)
        ts(P, 'cw0')
        p2c.park(P, wait=False)
        P.I('s_waitcnt vmcnt(4)')
        flag_set(P)
        ts(P, 'flag')
        P.I('s_waitcnt lgkmcnt(0)')
        p2c.late_w(P, p2.RING, p2.RING + o['mid'])
        poll(P, SPIN_MAX)
        p2c.LATE0[0] = p2.RING + o['mid']
    elif o['flagfirst']:
        assert o['xpos'] == 0
        P.I('v_mov_b32 v12, %d\nds_read_b32 v12, v12' % L_TAG)
        p2c.b_setup(P)
        srd(P, 8, 50, 2048 * 1024)
        P.I('v_readfirstlane_b32 s%d, v12' % S_TAG)
        P.I('s_waitcnt vmcnt(4)')
        flag_set(P)
        ts(P, 'flag')
        P.I('s_barrier')
        ts(P, 'cw0')
        p2c.park(P, 0, 3)
        p2c.late_w(P, p2.RING, p2.RING + min(3, o['mid']))
        p2c.park(P, 3, 6)
        p2c.late_w(P, p2.RING + min(3, o['mid']), p2.RING + o['mid'])
        poll(P, SPIN_MAX, o['back'])
        p2c.LATE0[0] = p2.RING + o['mid']
    else:
        P.I('s_barrier')
        tag_from_lds(P)
        ts(P, 'cw0')
        p2c.park(P)
        p2c.b_setup(P)
        srd(P, 8, 50, 2048 * 1024)
        P.I('s_waitcnt vmcnt(4)')
        flag_set(P)
        ts(P, 'flag')
        p2c.late_w(P, p2.RING, p2.NKS)
        poll(P, SPIN_MAX)
        p2c.LATE0[0] = p2.NKS
    ts(P, 'p2go')
    p2c.main(P, o['ld_aux'])
    if o['p2twice']:
        ts(P, 'cw1')
        p2c.main(P, o['ld_aux'])
    ts(P, 'p2main')
    p2c.tail(P, o['out_aux'])
    P.I('s_branch L_fin')
    P.new_path()
    P.I('L_cidle:')
    P.I('s_mov_b32 s71, 0x%x' % HUGE)
    P.I('s_waitcnt vmcnt(0)\ns_barrier\ns_branch L_cp2')
    P.new_path()
    P.I('L_fin:')
    ts.dump(P)
    P.I('L_end:\ns_endpgm')
    body = P.finalize() + table_text() + 'L_code_end:\n'
    txt = HEADER + '; @launch grid=(256,1,1) block=(512,1,1) lds=%d\n' % LDS_C
    txt += '.amdgcn_target "amdgcn-amd-amdhsa--gfx950"\n.text\n' + head(kn) + body + kd(kn, 256, 256)
    return txt


if __name__ == '__main__':
    out = sys.argv[1] if len(sys.argv) > 1 else 'i0.s'
    open(out, 'w').write(build())
    print('wrote', out)
```

```python
from fz import *
import p2, p2b

V_XB = 10
V_WQ = 9
L_RDY = 153600 + 2048
LDS_H = L_RDY + 64


def lane_patterns(P):
    P.I('''v_lshrrev_b32 v11, 3, v1
v_lshrrev_b32 v13, 4, v1
v_and_b32 v12, 7, v1
v_xor_b32 v14, v12, v13
v_lshlrev_b32 v14, 4, v14
v_lshl_add_u32 v%d, v11, 10, v14
v_lshrrev_b32 v14, 2, v11
v_and_b32 v11, 3, v11
v_lshl_add_u32 v11, v14, 3, v11
v_mul_u32_u24 v11, %d, v11
v_lshlrev_b32 v13, 1, v13
v_xor_b32 v12, v12, v13
v_lshl_add_u32 v%d, v12, 4, v11''' % (V_XB, PITCH_Q, V_WQ))
    for b in range(3):
        P.I('''v_add_u32 v11, %d, v1
v_mul_u32_u24 v12, 0x5556, v11
v_lshrrev_b32 v12, 18, v12
v_mul_u32_u24 v13, 12, v12
v_sub_u32 v13, v11, v13
v_bfe_u32 v14, v12, 2, 1
v_lshlrev_b32 v15, 1, v14
v_xor_b32 v13, v13, v15
v_bfe_u32 v15, v12, 3, 1
v_and_b32 v12, 3, v12
v_lshl_add_u32 v12, v14, 3, v12
v_lshl_add_u32 v12, v15, 2, v12
v_mul_u32_u24 v12, %d, v12
v_lshl_add_u32 v12, v13, 4, v12
v_subrev_u32 v%d, %d, v12''' % (64 * b, PITCH_F, V_WD0 + b, 1024 * b))
        if AUX.get('zl'):
            P.I('v_cmp_lt_u32 s[%d:%d], 3, v13' % (16 + 2 * b, 17 + 2 * b))


def w_setup(P, role):
    P.I('s_bitcmp1_b32 s57, 0')
    if role == 'ffn':
        P.I('s_cselect_b32 s8, s46, s44\ns_cselect_b32 s9, s47, s45\ns_cselect_b32 s12, s44, s46\ns_cselect_b32 s13, s45, s47')
        P.I('s_mov_b32 s10, 0x158000\ns_mov_b32 s11, 0x20000\ns_mov_b32 s14, 0x158000\ns_mov_b32 s15, 0x20000')
        P.I('''s_cselect_b32 s60, 0x3000, 0
s_mul_i32 s61, s56, 3072
s_add_u32 s61, s61, 24576
s_add_u32 s%d, s61, s60
s_xor_b32 s60, s60, 0x3000
s_add_u32 s%d, s61, s60
s_sub_u32 s60, s58, 8
s_mul_i32 s60, s60, 192
s_mul_i32 s61, s56, %d
s_add_u32 s%d, s60, s61''' % (S_M0W, S_M0W2, 16 * PITCH_F, S_WOFF))
    else:
        P.I('''s_cselect_b32 s62, %d, 0
s_cselect_b32 s60, 0xc00, 0
v_add_u32 v4, s62, v%d
s_mov_b32 s8, s38
s_mov_b32 s9, s39
s_mov_b32 s10, 0x180000
s_mov_b32 s11, 0x20000
s_mul_i32 s61, s56, 6144
s_add_u32 s61, s61, 26624
s_add_u32 s%d, s61, s60
s_xor_b32 s60, s60, 0xc00
s_add_u32 s%d, s61, s60
s_xor_b32 s62, s62, %d
v_add_u32 v5, s62, v%d
s_lshl_b32 s60, s58, 7
s_mul_i32 s61, s56, %d
s_add_u32 s%d, s60, s61''' % (4 * PITCH_Q, V_WQ, S_M0W, S_M0W2, 4 * PITCH_Q, V_WQ, 16 * PITCH_Q, S_WOFF))


def zero_light(P, role):
    if AUX.get('zl') and role == 'ffn':
        P.I('s_cmp_eq_u32 s58, 22\nv_mov_b32 v11, 0x%x' % HUGE)
        for b in range(3):
            P.I('s_cselect_b64 s[%d:%d], s[%d:%d], 0' % (16 + 2 * b, 17 + 2 * b, 16 + 2 * b, 17 + 2 * b))
        for b in range(3):
            P.I('v_cndmask_b32 v%d, v%d, v11, s[%d:%d]' % (V_WD0 + b, V_WD0 + b, 16 + 2 * b, 17 + 2 * b))


def rot_w(P, role):
    if AUX.get('rot'):
        P.I('s_bfe_u32 s75, s59, 0x3000d\ns_mul_i32 s60, s75, %d\ns_add_u32 s%d, s%d, s60' % (64 * (PITCH_F if role == 'ffn' else PITCH_Q), S_WOFF, S_WOFF))


def rot_x(P):
    if AUX.get('rot'):
        P.I('s_bfe_u32 s75, s59, 0x3000d\ns_lshl_b32 s60, s75, 7')
        for r in (2, 3, 7, 8):
            P.I('v_add_u32 v%d, s60, v%d' % (r, r))


def x_setup(P, role):
    P.I('s_sub_u32 s24, s36, 4096\ns_subb_u32 s25, s37, 0\ns_mov_b32 s26, 0x%x\ns_mov_b32 s27, 0x20000' % (2048 * 1024 + 4096))
    n, half = (6, 3) if role == 'ffn' else (7, 4)
    if role == 'ffn':
        P.I('s_mul_i32 s60, s56, 6')
    else:
        P.I('s_mul_i32 s60, s56, 7\ns_min_u32 s60, s60, 19')
    P.I('s_bitcmp1_b32 s58, 0\ns_cselect_b32 s61, %d, 0\ns_cselect_b32 s62, 0, 3' % half)
    P.I('s_add_u32 s61, s61, s60\ns_add_u32 s62, s62, s60')
    P.I('s_lshl_b32 s%d, s61, 10\ns_lshl_b32 s%d, s62, 10' % (S_M0X, S_M0X2))
    P.I('''s_and_b32 s63, s61, 1
s_lshl_b32 s63, s63, 6
v_xor_b32 v2, s63, v%d
v_xor_b32 v3, 64, v2
s_and_b32 s63, s62, 1
s_lshl_b32 s63, s63, 6
v_xor_b32 v7, s63, v%d
v_xor_b32 v8, 64, v7''' % (V_XB, V_XB))
    P.I('s_mul_i32 s63, s57, 192')
    if role == 'att':
        P.I('s_sub_u32 s63, s63, 16')
    P.I('s_lshl_b32 s61, s61, 3\ns_lshl_b32 s62, s62, 3\ns_add_u32 s61, s61, s63\ns_add_u32 s62, s62, s63')
    for q in range(n):
        g, i = (61, q) if q < 3 else (62, q - 3)
        if role == 'att' and i < 2:
            P.I('s_add_u32 s60, s%d, %d\ns_max_i32 s60, s60, 0\ns_lshl_b32 s60, s60, 10\ns_add_u32 s%d, s60, %d' % (g, 8 * i, S_XO + q, 4096 - 1024 * i))
        elif i == 0 or (role == 'att' and i == 2):
            P.I('s_lshl_b32 s%d, s%d, 10\ns_add_u32 s%d, s%d, %d' % (S_XO + q, g, S_XO + q, S_XO + q, 4096 + 7168 * i))
        else:
            P.I('s_add_u32 s%d, s%d, 7168' % (S_XO + q, S_XO + q - 1))


def pieces(role, c):
    g, adv = alt_list(role, c)
    return g, adv


def issue(P, role, c, lo, hi):
    g, adv = pieces(role, c)
    n = len(g)
    seq, m0 = [], None
    for i, grp in enumerate(g):
        for x in grp:
            if x.startswith('s_add_u32 m0'):
                m0 = x
        if i == lo and lo > 0 and not grp[0].startswith('s_add_u32 m0'):
            seq.append(m0)
        if lo <= i < hi:
            seq += [x + ' ;@def C%d' % c if 'buffer_load' in x else x for x in grp]
    if hi >= n and c < 7:
        seq += adv
    P.I('\n'.join(seq))


def aux_setup(P):
    srd(P, SRD_X, 36, 2048 * 1024)
    srd_off(P, SRD_AUX, 54, STATS_OFF, 0x200000)
    srd(P, SRD_DBG, 52, 256)


def ready_clear(P):
    P.I('v_mov_b32 v26, %d\nv_mov_b32 v27, 0\nds_write_b32 v26, v27 offset:0\nds_write_b32 v26, v27 offset:4\nds_write_b32 v26, v27 offset:8\nds_write_b32 v26, v27 offset:12\ns_waitcnt lgkmcnt(0)' % L_RDY)


def loader_poll(P, spin_max):
    P.I('''s_mul_i32 s60, s%d, 21846
s_lshr_b32 s60, s60, 16
s_mul_i32 s60, s60, 23
s_mul_i32 s61, s56, 5
s_add_u32 s61, s61, 2
s_cmp_eq_u32 s56, 0
s_cselect_b32 s61, 0, s61
s_cselect_b32 s62, 7, 5
s_add_u32 s60, s60, s61
s_lshl_b32 s60, s60, 7
s_add_u32 s70, s60, 0x%x
v_min_u32 v11, s62, v1
v_lshlrev_b32 v11, 7, v11
s_mov_b32 s61, 0''' % (p2.S_TB2, FLAGS_OFF - STATS_OFF))
    P.I('L_fspin:')
    P.I('buffer_load_dwordx4 v[48:51], v11, s[28:31], s70 offen sc1\ns_add_u32 s61, s61, 1\ns_waitcnt vmcnt(0)')
    P.I('v_and_b32 v48, v48, v49\nv_and_b32 v50, v50, v51\nv_and_b32 v48, v48, v50\nv_cmp_ne_u32 vcc, 1, v48')
    P.I('s_cmp_ge_u32 s61, %d\ns_cbranch_scc1 L_fok\ns_nop 2\ns_cbranch_vccz L_fok\ns_branch L_fspin' % spin_max)
    P.I('L_fok:')
    P.I('s_lshl_b32 s60, s56, 2\ns_add_u32 s60, s60, %d\nv_mov_b32 v26, s60\nv_mov_b32 v27, 1\nds_write_b32 v26, v27\ns_waitcnt lgkmcnt(0)' % L_RDY)


def ready_wait(P, spin_max):
    P.I('s_lshl_b32 s60, s56, 2\ns_add_u32 s60, s60, %d\nv_mov_b32 v11, s60\ns_mov_b32 s61, 0' % L_RDY)
    P.I('L_rspin:')
    P.I('ds_read_b32 v12, v11\ns_add_u32 s61, s61, 1\ns_waitcnt lgkmcnt(0)\nv_cmp_ne_u32 vcc, 1, v12')
    P.I('s_cmp_ge_u32 s61, %d\ns_cbranch_scc1 L_rok\ns_nop 2\ns_cbranch_vccz L_rok\ns_branch L_rspin' % (spin_max * 16))
    P.I('L_rok:')
```

```python
from ep4 import *

L_CS = 155776
LDS_C = L_CS + 4 * 1024 + 2048
XA = [7, 8]
WAs, WBs = [9, 2], [10, 3]


def ffn_addr_extra(P):
    P.I('''s_lshr_b32 s60, s56, 1
s_lshl_b32 s61, s60, 6
s_mul_i32 s62, s60, 6144
s_lshl_b32 s63, s62, 1
s_sub_u32 s63, 6144, s63
v_xor_b32 v7, s61, v7
v_xor_b32 v8, 64, v7
v_add_u32 v9, s62, v9
v_add_u32 v10, s62, v10
v_add_u32 v2, s63, v9
v_add_u32 v3, s63, v10
v_lshrrev_b32 v11, 4, v1
v_lshlrev_b32 v11, 4, v11
s_lshl_b32 s60, s56, 10
s_add_u32 s60, s60, %d
v_and_b32 v6, 15, v1
v_lshl_add_u32 v4, v6, 6, v11
v_add_u32 v4, s60, v4
s_xor_b32 s60, s60, 0x800
v_add_u32 v5, s60, v11''' % L_CS)
    assert L_CS % 4096 < 1024 or True
    for a_ in range(1, 6):
        P.I('v_cmp_eq_u32 s[%d:%d], %d, v6' % (62 + 2 * a_, 63 + 2 * a_, a_))


def a_rd(n):
    aidx, s_ = n % 6, (n // 6) % 2
    m, uu = aidx & 1, aidx >> 1
    reg = (WBs if uu == 1 else WAs)[s_]
    base = 24576 + m * 12288 + uu * 32
    d = V_FR + 48 + 4 * (n % 3)
    return ['ds_read_b64_tr_b16 %s, v%d offset:%d' % (v(d, 2), reg, base),
            'ds_read_b64_tr_b16 %s, v%d offset:%d' % (v(d + 2, 2), reg, base + 8 * 192)]


def partner_read(a_, dst):
    return 'ds_read_b128 %s, v5 offset:%d' % (v(dst, 4), 64 * a_)


def ffn_compute3(P, ts, pre):
    P.I('s_barrier')
    if ts:
        ts(P, 'chunk0')
    for b in range(6):
        P.I(ffn_B_read(b, 0, 0))
    P.I('\n'.join(a_rd(0) + a_rd(1)))
    busy = {('v', r) for r in range(40, 64)}
    early = [x for x in pre if not ((Ins(x).defs | Ins(x).uses) & busy)]
    late = [x for x in pre if x not in early]
    for c in range(8):
        mf, fill, starts = [], {}, []
        for ks in range(2):
            kk = 2 * c + ks
            for a_ in range(6):
                n = 6 * kk + a_
                base = len(mf)
                starts.append(base)
                for b in range(6):
                    mf.append(mfma(ffn_acc(a_, b), V_FR + 48 + 4 * (n % 3), V_FR + 24 * (kk % 2) + 4 * b, kk == 0))
                if ks == 0:
                    mf += extra_ffn(kk, a_, V_FR + 48 + 4 * (n % 3))
                last_chunk = c == 7
                if ks == 1 and a_ == 4:
                    fill.setdefault(base - 1, []).extend(['s_waitcnt lgkmcnt(0)'] + bar_stamp(c + 1) + ['s_barrier'] + bar_stamp2(c + 1))
                n2 = n + 2
                if n2 < 96:
                    r = a_rd(n2)
                    fill.setdefault(base, []).append(r[0])
                    fill.setdefault(base + 1, []).append(r[1])
                    if ks == 1 and a_ == 3 and not last_chunk:
                        d = STAGE if (c + 1) % NST else -(NST - 1) * STAGE
                        sw = ['v_add_u32 v%d, %d, v%d' % (r_, d, r_) for r_ in XA + WAs + WBs]
                        for q in range(3):
                            fill.setdefault(base + 2 + q, []).extend(sw[2 * q:2 * q + 2])
                if kk < 15:
                    if ks == 0 and a_ < 3:
                        for t in range(2):
                            fill.setdefault(base + 2 + t, []).append(ffn_B_read(2 * a_ + t, 1, (kk + 1) % 2))
                    if ks == 1 and a_ >= 4:
                        for t in range(3):
                            fill.setdefault(base + 2 + t, []).append(ffn_B_read(3 * (a_ - 4) + t, 0, (kk + 1) % 2))
        if c == 7:
            hoist(fill, starts[3], starts[6], early)
            w = []
            for a_ in range(1, 6):
                w += ['v_cndmask_b32 v%d, v%d, v%d, s[%d:%d]' % (36 + r, (cs_ffn(0) if a_ == 1 else 36) + r, cs_ffn(a_) + r, 62 + 2 * a_, 63 + 2 * a_) for r in range(4)]
            w += ['ds_write_b128 v4, v[36:39]']
            late = [x for x in late if x.startswith('ds_read')] + w + [x for x in late if not x.startswith('ds_read')]
            b0 = starts[10]
            fill.setdefault(b0, []).extend([partner_read(0, 36), partner_read(1, 100)])
            fill.setdefault(b0 + 1, []).extend([partner_read(2, 88)])
            adds = ['v_add_f32 v%d, v%d, v%d' % (cs_ffn(0) + r, cs_ffn(0) + r, 36 + r) for r in range(4)] + ['v_add_f32 v%d, v%d, v%d' % (cs_ffn(1) + r, cs_ffn(1) + r, 100 + r) for r in range(4)]
            for q in range(4):
                fill.setdefault(b0 + 8 + q, []).extend(adds[2 * q:2 * q + 2])
            bar = fill.pop(b0 - 1)
            hoist(fill, starts[6] + 1, b0 + 8, late)
            assert any('ds_write' in x for p in range(b0) for x in fill.get(p, []))
            fill.setdefault(b0 - 1, []).extend(bar)
        P.I('\n'.join(interleave(mf, fill)))
    P.I('\n'.join([partner_read(3, 92), partner_read(4, 36), partner_read(5, 100)]))


def ffn_cs_rest(uu):
    if uu == 1:
        src = {2: 88, 3: 92}
    elif uu == 2:
        src = {4: 36, 5: 100}
    else:
        return []
    return [pk('v_pk_add_f32', cs_ffn(a_) + 2 * h, cs_ffn(a_) + 2 * h, r + 2 * h) for a_, r in src.items() for h in range(2)]


def att_compute3(P, ts, pre, D=3, halo=True):
    NXB = D + 2
    P.I('s_mov_b32 s72, 0x10001\ns_mov_b32 s73, 0x10001')
    patch = lambda xb: ['v_cndmask_b32 v%d, v%d, v%d, s[72:73]' % (xb + r, xb + r, V_ONES + r) for r in range(4)]
    P.I('s_barrier')
    if ts:
        ts(P, 'chunk0')
    P.I('\n'.join(att_W_read(1, 0, 0) + att_W_read(2, 0, 0)))
    for t in range(D):
        P.I(att_X_read(t, 0, t % NXB))
    P.I('\n'.join(att_W_read(0, 0, 0)))
    if halo:
        P.I('\n'.join(patch(V_FR + 24)))
    for c in range(8):
        mf, fill, starts = [], {}, []
        for ks in range(2):
            kk = 2 * c + ks
            wb = V_FR + 12 * (kk % 2)
            for t in range(13):
                n = 13 * kk + t
                base = len(mf)
                starts.append(base)
                xb = V_FR + 24 + 4 * (n % NXB)
                mf.append(mfma(att_acck(t), wb + 4, xb, kk == 0))
                mf.append(mfma(att_accv(t), wb + 8, xb, kk == 0, swap=True))
                if t or halo:
                    mf.append(mfma(att_accq(t) if t else 20, wb, xb, kk == 0))
                if not halo:
                    mf += extra_att(kk, t, wb)
                last_chunk = c == 7
                bar_t = 13 - D
                if ks == 1 and t == bar_t:
                    fill.setdefault(base - 1, []).extend(['s_waitcnt lgkmcnt(0)'] + bar_stamp(c + 1) + ['s_barrier'] + bar_stamp2(c + 1))
                if ks == 1 and t == bar_t - 1 and not last_chunk:
                    sw = stage_switch('att', c)
                    fill.setdefault(base + 1, []).extend(sw[:2])
                    fill.setdefault(base + 2, []).extend(sw[2:])
                n2 = n + D
                if n2 < 13 * 16:
                    t2, ks2 = n2 % 13, (n2 // 13) % 2
                    fill.setdefault(base, []).append(att_X_read(t2, ks2, n2 % NXB))
                if t == 12 and kk < 15 and halo:
                    p = patch(V_FR + 24 + 4 * ((n + 1) % NXB))
                    fill.setdefault(base, []).extend(p[:1])
                    fill.setdefault(base + 1, []).extend(p[1:])
                if kk < 15:
                    order = [1, 2, 0]
                    if ks == 0 and 1 <= t <= 6:
                        m = order[(t - 1) // 2]
                        fill.setdefault(base + 1, []).append(att_W_read(m, 1, (kk + 1) % 2)[(t - 1) % 2])
                    if ks == 1 and t >= bar_t:
                        rd = [x for m in order for x in att_W_read(m, 0, (kk + 1) % 2)]
                        lo, hi = (6 * (t - bar_t)) // D, (6 * (t - bar_t + 1)) // D
                        for q, x in enumerate(rd[lo:hi]):
                            fill.setdefault(base + 1 + q, []).append(x)
        if c == 7:
            dp = ' row_newbcast:0 row_mask:0xf bank_mask:0xf'
            ex = ['v_mov_b32_dpp v%d, v%d%s' % (20 + r, 20 + r, dp) for r in range(4)]
            ex += ['v_mov_b32_dpp v%d, v%d%s' % (24 + r, att_acck(0) + r, dp) for r in range(4)]
            ex += ['v_mov_b32 v28, v%d' % att_accv(0), 'v_mov_b32 v29, v%d' % att_accv(0), 's_nop 0', 'v_permlane16_swap_b32 v28, v29',
                   'v_mov_b32 v29, v28', 's_nop 0', 's_nop 0', 'v_permlane32_swap_b32 v28, v29']
            hoist(fill, starts[13 + 1], starts[13 + 9], pre)
            if halo:
                hoist(fill, starts[13 + 9], len(mf), ex)
        P.I('\n'.join(interleave(mf, fill)))
```

```python
import sys, json
import gen_f, gen_i
from gen_i import *
def probe_kernel(idx, scale, red='avg'):
    P = Prog()
    P.I('probe_kernel:')
    P.I('s_load_dwordx4 s[52:55], s[0:1], 64')
    P.I('s_cmp_ge_u32 s2, 1\ns_cbranch_scc1 Lp_end')
    P.I('v_and_b32 v1, 63, v0\ns_waitcnt lgkmcnt(0)')
    srd_off(P, 32, 54, 0x4000000, 0x40000)
    for q in range(4):
        P.I('v_add_u32 v2, %d, v1\nv_lshlrev_b32 v2, 10, v2' % (64*q))
        P.I('buffer_load_dword v%d, v2, s[32:35], 0 offen offset:%d\nbuffer_load_dword v%d, v2, s[32:35], 0 offen offset:60' % (8+q, 4*idx, 12+q))
    P.I('v_min_u32 v12, v12, v13\nv_min_u32 v14, v14, v15\nv_min_u32 v12, v12, v14\ns_mov_b32 s11, -1')
    for l in range(64):
        P.I('v_readlane_b32 s5, v12, %d\ns_nop 3\ns_min_u32 s11, s11, s5' % l)
    for q in range(4):
        P.I('v_max_u32 v%d, s11, v%d\nv_subrev_u32 v%d, s11, v%d\nv_min_u32 v%d, 0x4000, v%d' % (8+q, 8+q, 8+q, 8+q, 8+q, 8+q))
    if red == 'avg':
        P.I('v_add_u32 v8, v8, v9\nv_add_u32 v10, v10, v11\nv_add_u32 v8, v8, v10\ns_mov_b32 s10, 0')
        for l in range(64): P.I('v_readlane_b32 s4, v8, %d\ns_nop 3\ns_add_u32 s10, s10, s4' % l)
        P.I('s_lshr_b32 s20, s10, 8')
    else:
        P.I('v_max_u32 v8, v8, v9\nv_max_u32 v10, v10, v11\nv_max_u32 v8, v8, v10\ns_mov_b32 s20, 0')
        for l in range(64): P.I('v_readlane_b32 s4, v8, %d\ns_nop 3\ns_max_u32 s20, s20, s4' % l)
    P.I('s_mul_i32 s20, s20, %d\ns_min_u32 s20, s20, 100000' % scale)
    P.I('s_memrealtime s[22:23]\ns_waitcnt lgkmcnt(0)\ns_mov_b32 s24, s22')
    P.I('Lp_spin:')
    P.I('s_memrealtime s[22:23]\ns_waitcnt lgkmcnt(0)\ns_sub_u32 s25, s22, s24\ns_cmp_lt_u32 s25, s20\ns_cbranch_scc1 Lp_spin')
    P.I('Lp_end:\ns_endpgm')
    return head('probe_kernel') + P.finalize().replace('v_cmp_gt_u32 s[20:21], 0x40, v1', 's_nop 0') + kd('probe_kernel', 32, 32)
def mk(name, txt, idx, scale, red='avg'):
    lines = txt.split('\n')
    L = [i for i,l in enumerate(lines) if l.startswith('; @launch')][0]
    l0 = lines[L].replace('; @launch ', '; @launch kernel=%s_kernel ' % gen_i.NAME)
    ls = lines[:L] + [l0, '; @launch kernel=probe_kernel grid=(1,1,1) block=(64,1,1) lds=0'] + lines[L+1:]
    open('var/%s.s' % name, 'w').write('\n'.join(ls) + probe_kernel(idx, scale, red))
if __name__ == '__main__':
    txt = gen_i.build('rt', tsrole=True)
    N = gen_f.TS.NAMES
    mk('r0', txt, 13, 0)
    mk('r1', txt, N.index('main'), 6)
    mk('r2', txt, N.index('w2iss'), 12)
    mk('r3', txt, N.index('epi'), 6)
    mk('r4', txt, N.index('polled'), 12)
    mk('r5', txt, N.index('p2main'), 4)
```

```python
import re, gen_i
txt = gen_i.build(False)
txt = re.sub(r' *;@(def|use) \w+', '', txt)
doc = ''';
'''
marker = '.amdgcn_target'
i = txt.index(marker)
txt = txt[:i] + txt[i:].replace('\n.text\n', '\n.text\n' + doc.lstrip('\n'), 1)
open('cdna_kernels/%s.s' % gen_i.NAME, 'w').write(txt)
print(len(txt))
```

```python
from ld import *

NONCE_OFF = 0x180000
L_ST = 153600 + 2048 + 32
L_TAG = 153600 + 2048 + 16
S_TAG = 3
L_PR = 155776 + 4096
S_TK = 82


def stats_compute(P, X, F):
    S, Q, T = [30, 31], [32, 33], [34, 35]
    for i in range(2):
        for d in range(4):
            P.I('v_lshlrev_b32 v%d, 16, v%d\nv_and_b32 v%d, 0xffff0000, v%d' % (F[i] + 2 * d, X[i] + d, F[i] + 2 * d + 1, X[i] + d))
        P.I('v_add_f32 v%d, v%d, v%d' % (S[i], F[i], F[i] + 1))
        for d in range(2, 8):
            P.I('v_add_f32 v%d, v%d, v%d' % (S[i], S[i], F[i] + d))
    wave_sum(P, S, T)
    for i in range(2):
        P.I('v_mul_f32 v%d, 0x3b000000, v%d' % (S[i], S[i]))
    for d in range(8):
        for i in range(2):
            P.I('v_sub_f32 v%d, v%d, v%d' % (T[i], F[i] + d, S[i]))
        for i in range(2):
            P.I(('v_mul_f32 v%d, v%d, v%d' if d == 0 else 'v_fmac_f32 v%d, v%d, v%d') % (Q[i], T[i], T[i]))
    wave_sum(P, Q, T)
    steps = ['v_mul_f32 v%(q)d, 0x3b000000, v%(q)d', 'v_cvt_pk_bf16_f32 v%(q)d, v%(q)d, v%(q)d', 'v_lshlrev_b32 v%(q)d, 16, v%(q)d',
             'v_add_f32 v%%(q)d, %s, v%%(q)d' % fbits(1e-5), 'v_cvt_pk_bf16_f32 v%(q)d, v%(q)d, v%(q)d', 'v_lshlrev_b32 v%(q)d, 16, v%(q)d',
             'v_sqrt_f32 v%(q)d, v%(q)d', 'v_nop', 'v_cvt_pk_bf16_f32 v%(s)d, v%(s)d, v%(q)d']
    for st in steps:
        for i in range(2):
            P.I(st % dict(q=Q[i], s=S[i]))
    P.I('s_lshl_b32 s60, s56, 3\ns_add_u32 s60, s60, %d\nv_mov_b32 v34, s60\nds_write_b64 v34, v[30:31]\ns_waitcnt lgkmcnt(0)' % L_ST)


def x_rows(P):
    P.I('''s_lshl_b32 s60, s2, 2
s_add_u32 s60, s60, s56
s_lshl_b32 s60, s60, 11
v_lshlrev_b32 v14, 4, v1
buffer_load_dwordx4 v[40:43], v14, s[4:7], s60 offen
buffer_load_dwordx4 v[44:47], v14, s[4:7], s60 offen offset:1024''')


def publish_tag(P):
    P.I('v_mov_b32 v25, 0\ns_mov_b32 s60, 0x%x\ns_mov_b64 exec, 1' % (NONCE_OFF - STATS_OFF))
    P.I('buffer_load_dword v24, v25, s[28:31], s60 offen sc0 sc1')
    P.I('v_add_u32 v24, 0x9e3779b9, v24\nv_max_u32 v24, 1, v24')
    P.I('buffer_store_dword v24, v25, s[32:35], 0 offen sc0 sc1')
    P.I('buffer_store_dword v24, v25, s[28:31], s60 offen sc0 sc1')
    P.I('s_mov_b64 exec, -1')


def tag_load(P):
    P.I('s_cmp_eq_u32 s56, 0\ns_cselect_b32 s72, 0, 0x%x\nv_mov_b32 v26, 0' % HUGE)
    P.I('buffer_load_dword v27, v26, s[32:35], s72 offen sc1')


def tag_wait(P, tag):
    P.I('s_cmp_lg_u32 s56, 0\ns_cbranch_scc1 L_tok%s' % tag)
    P.cond_begin()
    P.I('v_readfirstlane_b32 s%d, v27\ns_mov_b32 s61, 0\ns_nop 1\ns_cmp_lg_u32 s%d, 0\ns_cbranch_scc1 L_tgot%s' % (S_TAG, S_TAG, tag))
    P.I('L_tspin%s:' % tag)
    P.I('s_sleep 2\nbuffer_load_dword v27, v26, s[32:35], 0 offen sc1\ns_add_u32 s61, s61, 1\ns_waitcnt vmcnt(0)')
    P.I('v_readfirstlane_b32 s%d, v27\ns_cmp_ge_u32 s61, %d\ns_cbranch_scc1 L_tgot%s\ns_cmp_eq_u32 s%d, 0\ns_cbranch_scc1 L_tspin%s' % (S_TAG, SPIN_MAX, tag, S_TAG, tag))
    P.I('L_tgot%s:' % tag)
    P.I('v_mov_b32 v26, %d\nv_mov_b32 v27, s%d\nds_write_b32 v26, v27\ns_waitcnt lgkmcnt(0)' % (L_TAG, S_TAG))
    P.cond_end()
    P.I('L_tok%s:' % tag)


def stats_publish(P, tag):
    P.I('s_cmp_lg_u32 s56, 0\ns_cbranch_scc1 L_pub%s' % tag)
    P.cond_begin()
    P.I('v_lshlrev_b32 v26, 2, v1\nv_add_u32 v26, %d, v26\ns_mov_b64 exec, 0xff\nds_read_b32 v28, v26' % L_ST)
    P.I('v_mov_b32 v29, s%d\nv_lshlrev_b32 v26, 3, v1\ns_lshl_b32 s60, s2, 6\ns_waitcnt lgkmcnt(0)' % S_TAG)
    P.I('buffer_store_dwordx2 v[28:29], v26, s[28:31], s60 offen sc0 sc1\ns_mov_b64 exec, -1')
    P.cond_end()
    P.I('L_pub%s:' % tag)


def stats_fetch(P, tag):
    P.I('s_cmp_lg_u32 s56, 0\ns_cbranch_scc1 L_sf%s' % tag)
    P.cond_begin()
    P.I('''s_mul_i32 s60, s57, 192
s_sub_u32 s60, s60, 16
v_lshl_add_u32 v26, v1, 2, s60
v_max_i32 v26, 0, v26
v_min_u32 v26, 0x7fc, v26
v_lshlrev_b32 v26, 3, v26
buffer_load_dwordx4 v[28:31], v26, s[28:31], 0 offen sc1
buffer_load_dwordx4 v[32:35], v26, s[28:31], 0 offen offset:16 sc1''')
    P.cond_end()
    P.I('L_sf%s:' % tag)


def stats_check(P, tag):
    P.I('s_cmp_lg_u32 s56, 0\ns_cbranch_scc1 L_sc%s' % tag)
    P.cond_begin()
    P.I('s_mov_b32 s61, 0')
    P.I('L_sspin%s:' % tag)
    P.I('''v_xor_b32 v36, s%d, v29
v_xor_b32 v37, s%d, v31
v_xor_b32 v38, s%d, v33
v_xor_b32 v39, s%d, v35
v_or_b32 v36, v36, v37
v_or3_b32 v36, v36, v38, v39
v_cmp_ne_u32 vcc, 0, v36
s_add_u32 s61, s61, 1
s_cmp_ge_u32 s61, %d
s_cbranch_scc1 L_sok%s
s_nop 1
s_cbranch_vccz L_sok%s
s_sleep 2
buffer_load_dwordx4 v[28:31], v26, s[28:31], 0 offen sc1
buffer_load_dwordx4 v[32:35], v26, s[28:31], 0 offen offset:16 sc1
s_waitcnt vmcnt(0)
s_branch L_sspin%s''' % (S_TAG, S_TAG, S_TAG, S_TAG, SPIN_MAX, tag, tag, tag))
    P.I('L_sok%s:' % tag)
    for r, src in enumerate((28, 30, 32, 34)):
        P.I('v_and_b32 v%d, 0xffff0000, v%d\nv_lshlrev_b32 v%d, 16, v%d' % (40 + r, src, 36 + r, src))
    for r in range(4):
        P.I('v_rcp_f32 v%d, v%d\nv_xor_b32 v%d, 0x80000000, v%d' % (40 + r, 40 + r, 36 + r, 36 + r))
    P.I('v_lshlrev_b32 v26, 4, v1\nv_add_u32 v26, %d, v26\nds_write_b128 v26, v[36:39]\nds_write_b128 v26, v[40:43] offset:1024' % L_NM)
    for r in range(4):
        P.I('v_mov_b32 v%d, v%d\nv_mov_b32 v%d, v%d' % (52 + 2 * r, 36 + r, 53 + 2 * r, 40 + r))
    P.I('v_lshlrev_b32 v26, 5, v1\nv_add_u32 v26, %d, v26\nds_write_b128 v26, v[52:55]\nds_write_b128 v26, v[56:59] offset:16\ns_waitcnt lgkmcnt(0)' % L_PR)
    P.cond_end()
    P.I('L_sc%s:' % tag)


def tag_from_lds(P):
    P.I('v_mov_b32 v12, %d\nds_read_b32 v12, v12\ns_waitcnt lgkmcnt(0)\nv_readfirstlane_b32 s%d, v12' % (L_TAG, S_TAG))


def flag_set(P):
    P.I('v_mov_b32 v11, s%d\nv_mov_b32 v12, 0\ns_mov_b64 exec, 1' % S_TAG)
    P.I('buffer_store_dword v11, v12, s[28:31], s71 offen sc0 sc1')
    P.I('s_mov_b64 exec, -1')


def poll(P, spin_max, back=0, one=False):
    P.I('''s_mul_i32 s60, s%d, 21846
s_lshr_b32 s60, s60, 16
s_mul_i32 s60, s60, 23
s_mul_i32 s61, s56, 5
s_add_u32 s61, s61, 2
s_cmp_eq_u32 s56, 0
s_cselect_b32 s61, 0, s61
s_cselect_b32 s62, 7, 5
s_add_u32 s60, s60, s61
s_lshl_b32 s60, s60, 7
s_add_u32 s63, s60, 0x%x
v_min_u32 v11, s62, v1
v_lshlrev_b32 v11, 7, v11
s_mov_b32 s61, 0''' % (p2.S_TB2, FLAGS_OFF - STATS_OFF))
    P.I('L_fspin:')
    if one:
        P.I('buffer_load_dword v48, v11, s[28:31], s63 offen sc1\ns_add_u32 s61, s61, 1\ns_waitcnt vmcnt(0)\nv_cmp_ne_u32 vcc, s%d, v48' % S_TAG)
    else:
      P.I('buffer_load_dwordx4 v[48:51], v11, s[28:31], s63 offen sc1\ns_add_u32 s61, s61, 1\ns_waitcnt vmcnt(0)')
      P.I('''v_xor_b32 v48, s%d, v48
v_xor_b32 v49, s%d, v49
v_xor_b32 v50, s%d, v50
v_xor_b32 v51, s%d, v51
v_or_b32 v48, v48, v49
v_or3_b32 v48, v48, v50, v51
v_cmp_ne_u32 vcc, 0, v48''' % ((S_TAG,) * 4))
    P.I('s_cmp_ge_u32 s61, %d\ns_cbranch_scc1 L_fok\ns_nop 2\ns_cbranch_vccz L_fok\n%ss_branch L_fspin' % (spin_max, 's_sleep %d\n' % back if back else ''))
    P.I('L_fok:')


def w_touch_setup(P, k0, nk):
    per = -(-4288 // (255 // nk))
    pw = -(-per // 4)
    magic = -(-65536 // nk)
    assert all((d * magic) >> 16 == d // nk for d in range(256)) and pw <= 64
    P.I('''s_mul_i32 s60, s2, %d
s_lshr_b32 s60, s60, 16
s_mul_i32 s61, s60, %d
s_sub_u32 s61, s2, s61
s_add_u32 s%d, s61, %d
s_lshl_b32 s60, s60, 2
s_add_u32 s60, s60, s56
s_mul_i32 s60, s60, %d
v_add_u32 v44, s60, v1
v_cmp_gt_u32 vcc, %d, v1
v_mov_b32 v47, 0x%x
v_cndmask_b32 v44, v47, v44, vcc
v_subrev_u32 v45, 1536, v44
v_subrev_u32 v46, %d, v44
v_cmp_gt_u32 vcc, 1536, v44
v_lshlrev_b32 v44, 7, v44
v_cndmask_b32 v44, v47, v44, vcc
v_cmp_gt_u32 vcc, 1376, v45
v_lshlrev_b32 v45, 7, v45
v_cndmask_b32 v45, v47, v45, vcc
v_cmp_gt_u32 vcc, 1376, v46
v_lshlrev_b32 v46, 7, v46
v_cndmask_b32 v46, v47, v46, vcc''' % (magic, nk, S_TK, k0, pw, pw, HUGE, 1536 + 1376))


def w_touch(P, k, aux=''):
    P.I('s_cmp_eq_u32 s%d, %d\ns_cselect_b32 s62, %d, 0x%x' % (S_TK, k, 0, HUGE))
    P.I('s_add_u32 s60, s62, %d\ns_add_u32 s61, s62, %d' % (k * 64 * PITCH_Q, k * 64 * PITCH_F))
    srd(P, 20, 38, 0x180000)
    P.I('buffer_load_dword v48, v44, s[20:23], s60 offen %s' % aux)
    srd(P, 20, 44, 0x158000)
    P.I('buffer_load_dword v48, v45, s[20:23], s61 offen %s' % aux)
    srd(P, 20, 46, 0x158000)
    P.I('buffer_load_dword v48, v46, s[20:23], s61 offen %s' % aux)
```

```python
import sys, re
from p1c import *
import nz
import ld, p2, p2b, p2c, duty
from gen_f import NAME, HEADER, kd, head, TS

OPT = dict(split=8, st_aux='sc0 sc1', ld_aux='sc1', out_aux='', defer=2, cs=5, map2='8x4', pre_flag=0, nocs=False,
           p2alt=True, lpoll=False, depth=3, xearly=3, order='xw', early_stats=False, p2twice=False, sched=1, barts=None, w2pf=True, epi=2, sp0=8, ct=0, tailsync=True, xpos=0, xfirst=False, perm=None, pd=2, prio=1, smap=True, early=3, flagfirst=True, mid=6, rot=None, tailw=True, nobar=False, ep4=True, ew=4, touch=None, c0skip=0, wt=None, cheapcs=True, xm=0, attd=3, halo=True, zl=True, pfc=6, back=0, tsrole=False, oneflag=False)


def build(timing=False, **kw):
    o = dict(OPT)
    o.update(kw)
    AUX['rot'] = o['rot']
    import ep4
    ep4.EP.update(tp=TP, parts=False)
    AUX['alt'] = o['order']
    p2c.DEPTH[0] = o['depth']
    p2c.SCHED[0] = o['sched']
    p2c.XEARLY[0] = o['xearly']
    AUX['barts'] = o['barts']
    AUX['xm'] = o['xm']
    AUX['zl'] = o['zl']
    p2c.ALT[0] = o['p2alt']
    p2c.SMAP[0] = o['smap']
    p2c.TAILW[0] = o['tailw'] and o['smap']
    duty.ROT[0] = o['rot'] or [0] * 8
    duty.PERM[0] = o['perm'] or list(range(8))
    kn = NAME + '_kernel'
    P = Prog()
    ts = TS(timing)
    if o['barts']:
        ts.NAMES = ['c0'] + ['x%d' % i for i in range(8)] + ['main', 'epi', 'x']
    P.I(kn + ':')
    ts.start(P)
    P.I('s_load_dwordx16 s[36:51], s[0:1], 0\ns_load_dwordx4 s[52:55], s[0:1], 64')
    P.I('s_cmp_ge_u32 s2, 256\ns_cbranch_scc1 L_end')
    table_load(P)
    wave_split(P)
    P.I('s_cmp_ge_u32 s79, 4\ns_cbranch_scc1 L_loader')
    P.I('s_lshr_b32 s60, s2, 3\ns_lshl_b32 s60, s60, 2\ns_add_u32 s60, s60, s56\ns_lshl_b32 s60, s60, 9\nv_lshl_add_u32 v11, v1, 3, s60')
    P.I('v_min_u32 v11, L_code_end-L_pfpc-8, v11\nv_and_b32 v11, -4, v11')
    if o['xfirst']:
        P.I('s_waitcnt lgkmcnt(0)')
        srd(P, SRD_X, 36, 2048 * 1024)
        x_rows(P)
        P.I('global_load_dwordx2 v[100:101], v11, s[84:85]')
    else:
        P.I('global_load_dwordx2 v[100:101], v11, s[84:85]')
        P.I('s_waitcnt lgkmcnt(0)')
        srd(P, SRD_X, 36, 2048 * 1024)
        x_rows(P)
    P.I('s_branch L_compute')
    P.new_path()
    P.I('L_loader:')
    lane_patterns(P)
    P.I('s_waitcnt lgkmcnt(0)')
    ts.save_start(P)
    table_decode(P)
    P.I('s_bitcmp1_b32 s59, 7\ns_cbranch_scc1 L_lidle')
    P.I('s_cmp_lt_u32 s58, 8\ns_cbranch_scc1 L_latt0')
    sp = o['split']

    def first(role):
        if o['order'] == 'wx':
            w_setup(P, role)
            ts(P, 'setup')
            issue(P, role, 0, 0, 3)
            x_setup(P, role)
        else:
            x_setup(P, role)
            rot_x(P)
            ts(P, 'setup')
            issue(P, role, 0, 0, 3)
            w_setup(P, role)
            rot_w(P, role)
            zero_light(P, role)
        issue(P, role, 0, 3, 99)
        ts(P, 'issued')
        issue(P, role, 1, 0, o['sp0'])
        aux_setup(P)
        if o['c0skip']:
            P.I('s_waitcnt vmcnt(%d)' % (o['sp0'] + o['c0skip']))
        else:
            P.I('s_nop 0 ;@use C0')
        P.I('s_branch L_l%s' % role)
    first('ffn')
    P.new_path()
    P.I('L_latt0:')
    first('att')
    for role in ('ffn', 'att'):
        P.new_path()
        P.I('L_l%s:' % role)
        lag = 2 if o['tailsync'] else 1
        for c in range(8):
            if c:
                P.I('s_nop 0 ;@use C%d' % c)
            if c == 3 and o['nobar']:
                ready_clear(P)
            if c == o['ct'] + lag:
                tag_wait(P, role)
            if c == o['cs'] + lag:
                stats_check(P, role)
            if o['barts']:
                P.I('s_memtime s[80:81]\ns_waitcnt lgkmcnt(0)\ns_mov_b32 s%d, s80' % (86 + c))
            P.I('s_barrier')

            def sync_ops():
                if c == o['ct']:
                    tag_load(P)
                if c == o['ct'] + lag:
                    stats_publish(P, role)
                if c == o['cs']:
                    stats_fetch(P, role)
            if not o['tailsync']:
                sync_ops()
            if c + 1 < 8:
                issue(P, role, c + 1, sp if c else o['sp0'], 99)
            if c + 2 < 8:
                issue(P, role, c + 2, 0, sp)
            if o['tailsync']:
                sync_ops()
            if o['wt']:
                k0, lead = o['wt']
                if c == 0:
                    w_touch_setup(P, k0, 8 - k0)
                if k0 <= c + lead < 8:
                    w_touch(P, c + lead)
            if o['touch'] is not None and c == o['touch']:
                srd(P, 20, 50, 2048 * 1024)
                P.I('s_lshl_b32 s60, s2, 13\nv_mov_b32 v36, 0\ns_mov_b64 exec, 1\nbuffer_load_dword v37, v36, s[20:23], s60 offen\ns_mov_b64 exec, -1')
            if c == o['pfc'] and o['w2pf']:
                (w2_l2_prefetch84 if o['map2'] == '8x4' else w2_l2_prefetch)(P)
            if c == 7 and o['early']:
                p2b.decode(P, o['map2'])
                p2c.w_setup(P)
                p2c.late_w(P, 0, int(o['early']))
        if role == 'ffn':
            P.I('s_branch L_lw2')
    P.I('L_lw2:')
    if not o['early']:
        p2b.decode(P, o['map2'])
        p2c.w_setup(P)
    P.I('s_barrier')
    P.I('L_lw2b:')
    p2c.late_w(P, int(o['early']), p2.RING)
    ts(P, 'w2iss')
    P.I('s_waitcnt vmcnt(0)')
    if o['nobar']:
        P.I('s_lshl_b32 s60, s56, 2\ns_add_u32 s60, s60, %d\nv_mov_b32 v26, s60\nv_mov_b32 v27, 1\nds_write_b32 v26, v27\ns_waitcnt lgkmcnt(0)' % L_RDY)
    else:
        P.I('s_barrier')
    P.I('s_branch L_fin')
    P.new_path()
    P.I('L_lidle:')
    aux_setup(P)
    P.I('s_bitcmp1_b32 s59, 6\ns_cbranch_scc0 L_nopub\ns_cmp_lg_u32 s56, 0\ns_cbranch_scc1 L_nopub')
    P.cond_begin()
    publish_tag(P)
    P.cond_end()
    P.I('L_nopub:')
    ready_clear(P)
    tag_load(P)
    P.I('s_waitcnt vmcnt(0)')
    tag_wait(P, 'idle')
    P.I('s_barrier')
    stats_publish(P, 'idle')
    p2b.decode(P, o['map2'])
    p2c.w_setup(P)
    if o['early']:
        p2c.late_w(P, 0, int(o['early']))
    P.I('s_branch L_lw2b')
    P.new_path()
    P.I('L_compute:')
    ts.save_start(P)
    table_decode(P)
    P.I('s_waitcnt vmcnt(%d)' % (1 if o['xfirst'] else 0))
    srd_off(P, SRD_AUX, 54, STATS_OFF, 0x200000)
    srd_off(P, 16, 54, ACT_OFF, ACT_BYTES)
    stats_compute(P, [40, 44], [48, 56])
    P.I('s_bitcmp1_b32 s59, 7\ns_cbranch_scc1 L_cidle')
    P.I('s_cmp_lt_u32 s58, 8\ns_cbranch_scc1 L_catt')
    for role in ('ffn', 'att'):
        if role == 'att':
            P.new_path()
            P.I('L_catt:')
        frag_addr_setup(P, role)
        if o['cheapcs'] and role == 'ffn':
            ffn_addr_extra(P)
        ones_setup(P)
        P.I('s_waitcnt vmcnt(0)')
        if o['prio']:
            P.I('s_setprio %d' % o['prio'])
        if o['cheapcs']:
            assert o['ep4'] and o['ew'] == 4
            if role == 'ffn':
                ffn_compute3(P, lambda P, n: ts(P, 'c0'), ffn_pre())
            else:
                att_compute3(P, lambda P, n: ts(P, 'c0'), att_pre(), o['attd'], o['halo'])
        elif role == 'ffn' and o['pd'] == 3:
            ffn_compute2(P, lambda P, n: ts(P, 'c0'), None if o['nocs'] else extra_ffn, True, 3)
        else:
            (ffn_compute if role == 'ffn' else att_compute)(P, lambda P, n: ts(P, 'c0'), None if o['nocs'] else (extra_ffn if role == 'ffn' else extra_att), True, ((ffn_pre() if role == 'ffn' else att_pre()) if o['ep4'] else None))
        ts(P, 'w2iss' if (o['tsrole'] and role == 'att') else 'main')
        if o['ep4']:
            if role == 'ffn':
                ffn_epilogue4(P, o['st_aux'], o['defer'], True, o['ew'], cs_rest=ffn_cs_rest if o['cheapcs'] else None)
            else:
                att_epilogue4(P, o['st_aux'])
        elif role == 'ffn':
            ffn_epilogue2(P, o['st_aux'], o['defer'])
        else:
            att_epilogue2(P, o['st_aux'])
        ts(P, 'polled' if (o['tsrole'] and role == 'att') else 'epi')
        if role == 'ffn':
            P.I('s_branch L_cflag')
    P.I('L_cflag:')
    flag_offset(P, 62)
    P.I('s_mov_b32 s71, s62')
    P.I('L_cp2:')
    p2b.decode(P, o['map2'])
    if o['xpos'] == 0:
        p2b.x_setup(P)
        p2c.x_early(P)
    p2c.w_setup(P)
    p2c.a_addr_setup(P)
    if o['nobar']:
        P.I('v_mov_b32 v12, %d\nds_read_b32 v12, v12' % L_TAG)
        p2c.b_setup(P)
        srd(P, 8, 50, 2048 * 1024)
        P.I('v_readfirstlane_b32 s%d, v12' % S_TAG)
        ready_wait(P, SPIN_MAX)
        ts(P, 'cw0')
        p2c.park(P, wait=False)
        P.I('s_waitcnt vmcnt(4)')
        flag_set(P)
        ts(P, 'flag')
        P.I('s_waitcnt lgkmcnt(0)')
        p2c.late_w(P, p2.RING, p2.RING + o['mid'])
        poll(P, SPIN_MAX)
        p2c.LATE0[0] = p2.RING + o['mid']
    elif o['flagfirst']:
        assert o['xpos'] == 0
        P.I('v_mov_b32 v12, %d\nds_read_b32 v12, v12' % L_TAG)
        p2c.b_setup(P)
        srd(P, 8, 50, 2048 * 1024)
        P.I('v_readfirstlane_b32 s%d, v12' % S_TAG)
        P.I('s_waitcnt vmcnt(4)')
        if o['oneflag']:
            P.I('s_cmp_eq_u32 s56, 0\ns_cselect_b32 s71, s71, 0x%x' % HUGE)
            P.I('s_barrier')
            flag_set(P)
            ts(P, 'flag')
        else:
            flag_set(P)
            ts(P, 'flag')
            P.I('s_barrier')
        ts(P, 'cw0')
        p2c.park(P, 0, 3)
        p2c.late_w(P, p2.RING, p2.RING + min(3, o['mid']))
        p2c.park(P, 3, 6)
        p2c.late_w(P, p2.RING + min(3, o['mid']), p2.RING + o['mid'])
        poll(P, SPIN_MAX, o['back'], o['oneflag'])
        p2c.LATE0[0] = p2.RING + o['mid']
    else:
        P.I('s_barrier')
        tag_from_lds(P)
        ts(P, 'cw0')
        p2c.park(P)
        p2c.b_setup(P)
        srd(P, 8, 50, 2048 * 1024)
        P.I('s_waitcnt vmcnt(4)')
        flag_set(P)
        ts(P, 'flag')
        p2c.late_w(P, p2.RING, p2.NKS)
        poll(P, SPIN_MAX)
        p2c.LATE0[0] = p2.NKS
    ts(P, 'p2go')
    p2c.main(P, o['ld_aux'])
    if o['p2twice']:
        ts(P, 'cw1')
        p2c.main(P, o['ld_aux'])
    ts(P, 'p2main')
    p2c.tail(P, o['out_aux'])
    P.I('s_branch L_fin')
    P.new_path()
    P.I('L_cidle:')
    P.I('s_mov_b32 s71, 0x%x' % HUGE)
    P.I('s_waitcnt vmcnt(0)\ns_barrier\ns_branch L_cp2')
    P.new_path()
    P.I('L_fin:')
    ts.dump(P)
    P.I('L_end:\ns_endpgm')
    body = P.finalize() + table_text() + 'L_code_end:\n'
    txt = HEADER + '; @launch grid=(256,1,1) block=(512,1,1) lds=%d\n' % LDS_C
    txt += '.amdgcn_target "amdgcn-amd-amdhsa--gfx950"\n.text\n' + head(kn) + body + kd(kn, 256, 256)
    return txt


if __name__ == '__main__':
    out = sys.argv[1] if len(sys.argv) > 1 else 'i0.s'
    open(out, 'w').write(build())
    print('wrote', out)
```
